```python
import torch

def _softmax(x, axis=-1):
    return torch.softmax(x, dim=axis)
def _gelu(x):
    return torch.nn.functional.gelu(x, approximate="tanh")
def _silu(x):
    return torch.nn.functional.silu(x)
def _sigmoid(x):
    return torch.sigmoid(x)
def _layernorm(x, axis=-1, eps=1e-5):
    m = x.mean(dim=axis, keepdim=True)
    v = x.var(dim=axis, keepdim=True, unbiased=False)
    return (x - m) / torch.sqrt(v + eps)
def _scatter_add(tgt, idx, src, axis=0):
    return tgt.clone().index_add_(axis, idx, src)
def _segment_sum(src, seg, n):
    out = torch.zeros((n,) + src.shape[1:], dtype=src.dtype)
    return out.index_add_(0, seg, src)
def _pad(x, pw):
    flat = tuple(v for pair in reversed(pw) for v in pair)
    return torch.nn.functional.pad(x, flat)

kernel_name = 'gather_scatter__mpnn_edge_mlp__graph'

def setup_inputs():

    _w = (lambda a: (lambda t: t.to(torch.bfloat16) if t.is_floating_point() else t)(torch.as_tensor(a)))
    N, deg, D, De = 10000, 16, 128, max(4, 1)
    E = N * deg
    return {
        "x": _w((lambda *s: torch.randn(*s, dtype=torch.bfloat16) * 0.05)(N, D)),
        "e_attr": _w((lambda *s: torch.randn(*s, dtype=torch.bfloat16) * 0.4)(E, De)),
        "src": _w((lambda lo, hi, *s: torch.randint(lo, hi, s))(0, N, E).to(torch.int64)),
        "dst": _w((lambda lo, hi, *s: torch.randint(lo, hi, s))(0, N, E).to(torch.int64)),
        "w_msg": _w((lambda *s: torch.randn(*s, dtype=torch.bfloat16) * 0.4)(2 * D + De, D)),
        "w_upd": _w((lambda *s: torch.randn(*s, dtype=torch.bfloat16) * 0.05)(2 * D, D)),
    }

def reference(x, e_attr, src, dst, w_msg, w_upd):
    N, D = x.shape
    m_in = torch.concatenate([x[src], x[dst], e_attr], axis=-1)
    msg = _silu(m_in @ w_msg)
    agg = _segment_sum(msg, dst, N)
    return _silu(torch.concatenate([x, agg], axis=-1) @ w_upd)
```

```python
import sys
KN = "gather_scatter__mpnn_edge_mlp__graph_kernel"
OPT = dict(stamps=0, force_mode=0, spin=2000, gsc1=0, pf=1, epf=1, wu1=0, t01=2, wpf=1)
for a in sys.argv[2:]:
    k, v = a.split("="); OPT[k] = int(v)

N, E = 10000, 160000
CH = 625
CAP = 448
CS = CAP * 16 + 64
R = 4
L_OH, L_LIST, LSTR = 0, 8 * CS, 2560
L_CNT = L_LIST + 2 * LSTR
L_CNT2 = L_CNT + 1024
L_MODE = L_CNT2 + 8
L_EPOCH = L_CNT2 + 12
L_X = 32768
L_RING = 65536
L_A, L_B, L_C = L_RING, L_RING + 32768, 131072
SLOT = 16384
LDS = 163840
W_FLAG, W_P, W_SLOT, W_STAMP = 0x10000, 0x80000, 0x400000, 0x1000000
SENT = 0x3FFFFFFF
NLOG2E = 0xBFB8AA3B
NLN2 = 0xBF317218

out = []
def e(s): out.append("    " + s)
def lab(s): out.append(s + ":")
def nop(n): e("s_nop %d" % (n - 1))

class Al:
    def __init__(s, start): s.n = start
    def __call__(s, cnt=1, al=1):
        s.n = (s.n + al - 1) // al * al
        r = s.n; s.n += cnt; return r
va = Al(1)
def vr(b, n): return "v[%d:%d]" % (b, b + n - 1)
def sr(b, n=2): return "s[%d:%d]" % (b, b + n - 1)

sX, sEA, sSRC, sDST, sWM, sWU, sOUT, sDBG, sWS = 4, 6, 8, 10, 12, 14, 16, 18, 20
sXD, sPD, sED, sDD, sSD = 24, 28, 32, 36, 40
sW, sSB, sCB, sT, sE1, sNT, sIT, sMODE, sLVL, sSTEP, sRB, sCP, sTMP, sTMP2, sSPIN = range(44, 59)
sM = 60
sNA, sVA, sVB, sNB, sPA, sPB, sODD, sQ, sQ2, sPEND, sNV = 72, 74, 76, 78, 80, 82, 84, 86, 88, 90, 92
sC1, sC2 = 94, 96
sST = 98
vL = va(); vDO = va(); vAS0 = va(); vAS1 = va(); vWN = va(); vWP = va()
vP0 = va(); vP1 = va(); vOH = va(); vS = va(); vLI = va(); vTW = va(); vSW = va(); vCB = va(); vONE = va(); vFA = va(); vBF1 = va(); vEB = va(); vSL = va()
vI0 = va(2, 2); vI1 = va(2, 2)
T = va(24, 4)
Y0 = va(16, 4); Y1 = va(16, 4); EE = va(16, 4); MSG = va(8, 4); AGG = va(16, 4); U = va(16, 4)
QW = va(8, 4); ID = va(8, 4); PA = va(8, 4); OA = va(8, 4); SA = va(8, 4)
W1F = va(32, 4); XF = va(32, 4)
WT = Y0
stampn = [0]
vST = va(16, 4)
assert va.n <= 256, va.n

snames = ["start"]
def stamp(name="?", sets=(1,)):
    if OPT["stamps"] not in sets: return
    snames.append(name)
    i = stampn[0]; stampn[0] += 1
    e("s_memrealtime %s" % sr(sST)); e("s_waitcnt lgkmcnt(0)"); e("v_mov_b32 v%d, s%d" % (vST + i, sST))

def mfma(d, a, b, c):
    e("v_mfma_f32_32x32x16_bf16 %s, %s, %s, %s" % (vr(d, 16), vr(a, 4), vr(b, 4), c if isinstance(c, str) else vr(c, 16)))

def setm0(val_s=None, imm=0):
    if val_s is None: e("s_mov_b32 m0, 0x%x" % imm)
    elif imm == 0: e("s_mov_b32 m0, s%d" % val_s)
    else: e("s_add_u32 m0, s%d, 0x%x" % (val_s, imm))

def w_dma(sbase, rowoff, ldsbase):
    for i in range(4):
        e("s_add_u32 m0, s%d, 0x%x" % (sTMP2, ldsbase + i * 1024))
        e("v_add_u32 v%d, 0x%x, v%d" % (T + 20, rowoff * 256 + i * 4096, vSW))
        e("global_load_lds_dwordx4 v%d, %s" % (T + 20, sr(sbase)))

def w_frag(dst, vaddr, ldsbase):
    e("v_add_u32 v%d, 0x%x, v%d" % (T + 20, ldsbase, vaddr))
    for j in range(8):
        for u in range(2):
            e("ds_read_b64_tr_b16 %s, v%d offset:%d" % (vr(dst + 4 * j + 2 * u, 2), T + 20, j * 1024 + u * 256))

def tile_frag(dst, sbase_imm, segstride):
    e("s_mul_i32 s%d, s%d, %d" % (sTMP, sSB, 4 * segstride))
    e("s_add_u32 s%d, s%d, 0x%x" % (sTMP, sTMP, sbase_imm))
    e("v_add_u32 v%d, s%d, v%d" % (T + 21, sTMP, vAS0))
    e("v_add_u32 v%d, s%d, v%d" % (T + 22, sTMP, vAS1))
    for j in range(8):
        e("ds_read_b128 %s, v%d offset:%d" % (vr(dst + 4 * j, 4), T + 21 + (j & 1), (j >> 1) * segstride))

def node_idx(schunk):
    e("v_lshrrev_b32 v%d, 2, v%d" % (T, vL))
    e("s_lshl_b32 s%d, s%d, 8" % (sTMP, sSB))
    e("s_add_u32 s%d, s%d, s%d" % (sTMP, sTMP, schunk))
    e("v_lshl_add_u32 v%d, v%d, 9, s%d" % (vI0, T, sTMP))
    e("v_add_u32 v%d, 0x2000, v%d" % (vI1, vI0))

def x_dma():
    e("s_lshl_b32 s%d, s%d, 11" % (sTMP, sW))
    e("s_add_u32 m0, s%d, 0x%x" % (sTMP, L_X))
    nop(1)
    e("buffer_load_dwordx4 %s, %s, 0 idxen offen lds" % (vr(vI0, 2), sr(sXD, 4)))
    e("s_add_u32 m0, s%d, 0x%x" % (sTMP, L_X + 1024))
    nop(1)
    e("buffer_load_dwordx4 %s, %s, 0 idxen offen lds" % (vr(vI1, 2), sr(sXD, 4)))

def srd(d, base, stride, nrec, add=0):
    if add:
        e("s_add_u32 s%d, s%d, 0x%x" % (d, base, add))
        e("s_addc_u32 s%d, s%d, 0" % (d + 1, base + 1))
        if stride: e("s_or_b32 s%d, s%d, 0x%x" % (d + 1, d + 1, stride << 16))
    else:
        e("s_mov_b32 s%d, s%d" % (d, base))
        if stride: e("s_or_b32 s%d, s%d, 0x%x" % (d + 1, base + 1, stride << 16))
        else: e("s_mov_b32 s%d, s%d" % (d + 1, base + 1))
    e("s_mov_b32 s%d, %d" % (d + 2, nrec))
    e("s_mov_b32 s%d, 0x20000" % (d + 3))

def tr_addr(sbase, imm):
    e("s_add_u32 s%d, s%d, 0x%x" % (sTMP, sbase, imm))
    e("v_add_u32 v%d, s%d, v%d" % (T + 8, sTMP, vTW))
    e("v_xor_b32 v%d, 16, v%d" % (T + 9, T + 8))
    e("v_lshl_add_u32 v%d, v%d, 4, s%d" % (T + 10, vL, sTMP))

def tr_store(src, srdreg, flags):
    e("ds_write_b128 v%d, %s" % (T + 8, vr(src, 4)))
    e("ds_write_b128 v%d, %s" % (T + 9, vr(src + 4, 4)))
    e("ds_read_b128 %s, v%d" % (vr(src, 4), T + 10))
    e("ds_read_b128 %s, v%d offset:1024" % (vr(src + 4, 4), T + 10))
    e("s_waitcnt lgkmcnt(1)")
    e("buffer_store_dwordx4 %s, %s, %s, 0 idxen offen%s" % (vr(src, 4), vr(vI0, 2), sr(srdreg, 4), flags))
    e("s_waitcnt lgkmcnt(0)")
    e("buffer_store_dwordx4 %s, %s, %s, 0 idxen offen%s" % (vr(src + 4, 4), vr(vI1, 2), sr(srdreg, 4), flags))

def p_compute(wf=None, fused=False):
    wf = W1F if wf is None else wf
    if fused:
        e("s_lshl_b32 s%d, s%d, 13" % (sTMP, sSB))
        e("s_add_u32 s%d, s%d, 0x%x" % (sTMP, sTMP, L_X))
        e("v_add_u32 v%d, s%d, v%d" % (T + 21, sTMP, vAS0))
        e("v_add_u32 v%d, s%d, v%d" % (T + 22, sTMP, vAS1))
        e("v_add_u32 v%d, 0x%x, v%d" % (T + 20, L_B, vWP))
        def rd(j):
            e("ds_read_b128 %s, v%d offset:%d" % (vr(XF + 4 * j, 4), T + 21 + (j & 1), (j >> 1) * 2048))
            for u in range(2):
                e("ds_read_b64_tr_b16 %s, v%d offset:%d" % (vr(wf + 4 * j + 2 * u, 2), T + 20, j * 1024 + u * 256))
        for j in range(5): rd(j)
        for j in range(8):
            e("s_waitcnt lgkmcnt(%d)" % (3 * min(4, 7 - j)))
            mfma(EE, wf + 4 * j, XF + 4 * j, "0" if j == 0 else EE)
            if j + 5 < 8: rd(j + 5)
        e("s_barrier")
        stamp("barC0", (2,))
    else:
        for j in range(8):
            mfma(EE, wf + 4 * j, XF + 4 * j, "0" if j == 0 else EE)
    tr_addr(sTMP2, L_B)
    nop(8)
    for j in range(8):
        e("v_pk_mul_f32 %s, %s, %s" % (vr(EE + 2 * j, 2), vr(EE + 2 * j, 2), sr(sC1)))
    for j in range(8):
        e("v_cvt_pk_bf16_f32 v%d, v%d, v%d" % (MSG + j, EE + 2 * j, EE + 2 * j + 1))
    if fused and OPT["stamps"] == 4:
        stamp("cvt", (4,)); e("s_waitcnt vmcnt(0)"); stamp("puback", (4,))
    tr_store(MSG, sPD, " sc1")
    if fused and OPT["stamps"] == 4:
        stamp("pst", (4,)); e("s_waitcnt vmcnt(0)"); stamp("pack0", (4,))

def qu_compute():
    w_frag(WT, vWN, L_B)
    e("v_add_u32 v%d, 0x%x, v%d" % (T + 21, L_C, vWP))
    for j in range(4): e("v_mov_b32 v%d, 0" % (MSG + j))
    e("v_and_b32 v%d, 31, v%d" % (T + 22, vL))
    e("s_lshl_b32 s%d, s%d, 6" % (sTMP, sCB))
    e("v_lshl_add_u32 v%d, v%d, 1, s%d" % (T + 22, T + 22, sTMP))
    def rl(j):
        for u in range(2):
            e("ds_read_b64_tr_b16 %s, v%d offset:%d" % (vr(WT + 4 * j + 2 * u, 2), T + 21, j * 1024 + u * 256))
    for j in range(8):
        e("s_waitcnt lgkmcnt(%d)" % (14 if j == 0 else 12))
        mfma(AGG, XF + 4 * j, WT + 4 * j, "0" if j == 0 else AGG)
        if j: rl(j - 1)
    for j in range(8):
        e("s_waitcnt lgkmcnt(%d)" % (12 if j == 0 else (4 if j == 7 else 2 * (6 - j) + 2 + min(j - 1, 4))))
        mfma(U, WT + 4 * j, XF + 4 * j, "0" if j == 0 else U)
        if j == 0: rl(7)
        elif j <= 4: e("ds_read_u16_d16_hi v%d, v%d offset:%d" % (MSG + j - 1, T + 22, L_CNT + 256 * (j - 1)))
    e("s_waitcnt lgkmcnt(0)")
    e("s_mov_b32 exec_lo, 0")
    for j in range(4): e("v_mov_b32 v%d, v%d" % (AGG + 8 + j, MSG + j))
    e("s_mov_b32 exec_lo, -1")
    for j in range(8): e("v_pk_mul_f32 %s, %s, %s" % (vr(AGG + 2 * j, 2), vr(AGG + 2 * j, 2), sr(sC1)))
    for j in range(8): e("v_cvt_pk_bf16_f32 v%d, v%d, v%d" % (QW + j, AGG + 2 * j, AGG + 2 * j + 1))
    for j in range(16): e("v_mov_b32 v%d, 0" % (AGG + j))

def reset_lists(tag):
    for j in range(4): e("v_mov_b32 v%d, 0" % (T + j))
    e("v_lshlrev_b32 v%d, 4, v0" % (T + 8))
    for j in range(7): e("ds_write_b128 v%d, %s offset:%d" % (T + 8, vr(T, 4), j * 8192))
    e("v_cmp_lt_u32 vcc, 31, v0")
    nop(2)
    e("v_cndmask_b32_e64 v%d, 0, -1, vcc" % (T + 4))
    for j in range(1, 4): e("v_mov_b32 v%d, v%d" % (T + 4 + j, T + 4))
    e("v_cmp_gt_u32 vcc, 352, v0")
    e("s_and_b64 exec, vcc, -1")
    e("s_cbranch_execz L_rl_%s" % tag)
    e("ds_write_b128 v%d, %s offset:%d" % (T + 8, vr(T + 4, 4), 7 * 8192))
    lab("L_rl_%s" % tag)
    e("s_mov_b64 exec, -1")
    e("v_mov_b32 v%d, %d" % (T + 8, L_CNT2))
    e("ds_write_b64 v%d, %s" % (T + 8, vr(T, 2)))

def rec_a(x, n, eid, ev):
    e("v_bfe_u32 v%d, v%d, 19, 1" % (n, x))
    e("v_lshlrev_b32 v%d, 2, v%d" % (n, n))
    e("ds_add_rtn_u32 v%d, v%d, v%d offset:%d" % (n, n, vONE, L_CNT2))
    if ev is None: return
    e("v_lshlrev_b32 v%d, 3, v%d" % (eid, eid))
    e("buffer_load_dwordx2 %s, v%d, %s, 0 offen" % (vr(ev, 2), eid, sr(sED, 4)))

def rec_b(x, n, t0, t1):
    e("v_bfe_u32 v%d, v%d, 19, 1" % (t0, x))
    e("v_mul_u32_u24 v%d, %d, v%d" % (t1, LSTR // 4, t0))
    e("v_add_lshl_u32 v%d, v%d, v%d, 2" % (t1, t1, n))
    e("v_lshlrev_b32 v%d, 4, v%d" % (n, n))
    e("v_and_b32 v%d, 0x3fff, v%d" % (vFA, x))
    e("ds_write_b32 v%d, v%d offset:%d" % (t1, vFA, L_LIST))
    e("v_bfe_u32 v%d, v%d, 17, 3" % (t1, x))
    e("v_mad_u32_u24 v%d, v%d, v%d, v%d" % (t1, t1, vCB, n))
    e("v_bfe_u32 v%d, v%d, 14, 3" % (vFA, x))
    e("v_lshl_add_u32 v%d, v%d, 1, v%d" % (t1, vFA, t1))
    e("ds_write_b16 v%d, v%d" % (t1, vBF1))
    e("v_lshlrev_b32 v%d, 2, v%d" % (t0, t0))
    e("v_mad_u32_u24 v%d, v%d, v%d, v%d" % (n, t0, vCB, n))

def make_rec(dst, src, rec, t0, t1):
    e("v_bfe_u32 v%d, v%d, 9, 5" % (t0, dst))
    e("v_and_b32 v%d, 0x13, v%d" % (rec, t0))
    e("v_and_b32 v%d, 4, v%d" % (t1, t0))
    e("v_lshl_or_b32 v%d, v%d, 1, v%d" % (rec, t1, rec))
    e("v_bfe_u32 v%d, v%d, 3, 1" % (t1, t0))
    e("v_lshl_or_b32 v%d, v%d, 2, v%d" % (rec, t1, rec))
    e("v_bfe_u32 v%d, v%d, 8, 1" % (t1, dst))
    e("v_lshl_or_b32 v%d, v%d, 5, v%d" % (rec, t1, rec))
    e("v_and_b32 v%d, 0x3fff, v%d" % (t1, src))
    e("v_lshl_or_b32 v%d, v%d, 14, v%d" % (rec, rec, t1))

out.append("; @launch grid=(256,1,1) block=(512,1,1) lds=%d" % LDS)
out.append('.amdgcn_target "amdgcn-amd-amdhsa--gfx950"')
out.append(".text"); out.append(".globl " + KN); out.append(".p2align 8"); out.append(".type %s,@function" % KN)
lab(KN)
e("s_cmp_ge_u32 s2, 256")
e("s_cbranch_scc1 L_end")
e("s_load_dwordx16 s[4:19], s[0:1], 0")
e("s_load_dwordx2 s[20:21], s[0:1], 64")
if OPT["stamps"]:
    e("s_memrealtime %s" % sr(sST))
e("v_lshrrev_b32 v%d, 6, v0" % T)
e("v_and_b32 v%d, 63, v0" % vL)
e("v_readfirstlane_b32 s%d, v%d" % (sW, T))
if OPT["pf"]:
    e("s_sub_u32 s%d, s%d, 3" % (sTMP, sW))
    e("s_cmp_gt_u32 s%d, 1" % sTMP)
    e("s_cbranch_scc1 L_nopf")
    e("s_getpc_b64 %s" % sr(sQ))
    lab("L_pc")
    e("v_and_b32 v%d, 127, v0" % (T + 18))
    e("v_lshlrev_b32 v%d, 7, v%d" % (T + 18, T + 18))
    e("v_min_u32 v%d, L_codeend-L_pc-4, v%d" % (T + 18, T + 18))
    e("global_load_dword v%d, v%d, %s" % (T + 18, T + 18, sr(sQ)))
    lab("L_nopf")
e("s_mul_i32 s%d, s2, %d" % (sTMP, CH * 4))
e("v_lshl_add_u32 v%d, v0, 2, s%d" % (T + 16, sTMP))
e("s_lshr_b32 s%d, s%d, 2" % (sSB, sW))
e("s_and_b32 s%d, s%d, 3" % (sCB, sW))
for j in range(4): e("v_mov_b32 v%d, 0x%x" % (T + 4 + j, SENT))
e("v_lshlrev_b32 v%d, 4, v0" % (T + 8))
e("v_mov_b32 v%d, 0" % (T + 17))
e("v_lshlrev_b32 v%d, 2, v0" % (T + 9))
e("v_lshrrev_b32 v%d, 4, v%d" % (T, vL))
e("v_xor_b32 v%d, v%d, v%d" % (T + 1, T, vL))
e("v_and_b32 v%d, 3, v%d" % (T + 1, T + 1))
e("s_lshl_b32 s%d, s%d, 6" % (sTMP, sCB))
e("v_lshl_add_u32 v%d, v%d, 4, s%d" % (vI0 + 1, T + 1, sTMP))
e("v_mov_b32 v%d, v%d" % (vI1 + 1, vI0 + 1))
e("v_lshrrev_b32 v%d, 2, v%d" % (T + 1, vL))
e("v_and_b32 v%d, 3, v%d" % (T + 2, vL))
e("v_lshlrev_b32 v%d, 8, v%d" % (T + 1, T + 1))
e("v_lshl_add_u32 v%d, v%d, 4, v%d" % (T + 1, T + 2, T + 1))
e("s_lshl_b32 s%d, s%d, 14" % (sTMP2, sSB))
e("s_add_u32 s%d, s%d, s%d" % (sTMP, sTMP, sTMP2))
e("v_add_u32 v%d, s%d, v%d" % (vSW, sTMP, T + 1))
e("s_lshl_b32 s%d, s%d, 13" % (sTMP2, sCB))
e("s_lshl_b32 s%d, s%d, 12" % (sTMP, sSB))
e("s_add_u32 s%d, s%d, s%d" % (sTMP2, sTMP2, sTMP))
e("v_cmp_gt_u32 %s, %d, v0" % ("vcc", CH - 512))
e("s_mov_b64 %s, vcc" % sr(sQ2))
node_idx(2)
e("s_waitcnt lgkmcnt(0)")
if OPT["stamps"]:
    e("v_mov_b32 v%d, s%d" % (vST, sST)); stampn[0] = 1
stamp("karg", (1,2,3))
e("global_load_dword v%d, v%d, %s" % (T + 10, T + 16, sr(sDST)))
e("global_load_dword v%d, v%d, %s" % (T + 11, T + 16, sr(sSRC)))
srd(sXD, sX, 256, N)
e("s_cmp_ge_u32 s%d, 2" % sW)
e("s_cbranch_scc1 L_no2")
e("s_mov_b64 exec, %s" % sr(sQ2))
e("global_load_dword v%d, v%d, %s offset:2048" % (T + 12, T + 16, sr(sDST)))
e("global_load_dword v%d, v%d, %s offset:2048" % (T + 13, T + 16, sr(sSRC)))
e("s_mov_b64 exec, -1")
e("s_branch L_nowpf")
lab("L_no2")
e("s_lshr_b32 s%d, s2, 3" % sTMP)
e("s_cmp_lg_u32 s%d, 2" % sW)
e("s_cbranch_scc1 L_noe")
e("global_load_dword v%d, v%d, %s sc1" % (T + 15, T + 17, sr(sWS)))
lab("L_noe")
e("s_cmp_lg_u32 s%d, 7" % sW)
e("s_cbranch_scc1 L_nw7")
e("s_lshl_b32 s%d, s%d, 11" % (sQ, sTMP))
e("v_lshl_add_u32 v%d, v%d, 5, s%d" % (T + 21, vL, sQ))
e("global_load_dword v%d, v%d, %s" % (T + 21, T + 21, sr(sWU)))
lab("L_nw7")
e("s_cmp_lg_u32 s%d, 6" % sW)
e("s_cbranch_scc1 L_nw6")
e("s_mul_i32 s%d, s%d, 2080" % (sQ, sTMP))
e("v_lshl_add_u32 v%d, v%d, 5, s%d" % (T + 21, vL, sQ))
e("global_load_dword v%d, v%d, %s offset:60" % (T + 21, T + 21, sr(sWM)))
lab("L_nw6")
e("s_cmp_lg_u32 s%d, 5" % sW)
e("s_cbranch_scc1 L_nowpf")
e("s_mul_i32 s%d, s2, %d" % (sQ, CH * 8))
e("v_mul_u32_u24 v%d, 76, v%d" % (T + 21, vL))
e("v_add_u32 v%d, s%d, v%d" % (T + 21, sQ, T + 21))
e("global_load_dword v%d, v%d, %s offset:104" % (T + 21, T + 21, sr(sEA)))
lab("L_nowpf")
x_dma()
e("ds_write_b32 v%d, v%d offset:%d" % (T + 9, T + 17, L_CNT))
for j in range(4): e("ds_write_b128 v%d, %s offset:%d" % (T + 8, vr(T + 4, 4), j * 8192))
e("v_mov_b32 v%d, 1" % vONE)
e("v_lshrrev_b32 v%d, 1, v0" % (T + 4))
e("v_and_b32 v%d, 1, v0" % (T + 5))
e("v_lshlrev_b32 v%d, 4, v%d" % (T + 5, T + 5))
e("v_lshl_add_u32 v%d, v%d, 7, v%d" % (T + 19, T + 4, T + 5))
e("v_lshlrev_b32 v%d, 2, v%d" % (T + 22, T + 4))
e("s_lshl_b32 s%d, s2, 5" % sTMP)
e("s_add_u32 s%d, s%d, 0x%x" % (sTMP, sTMP, W_SLOT))
e("v_lshl_add_u32 v%d, v%d, 13, v%d" % (T + 23, T + 4, T + 5))
e("v_add_u32 v%d, s%d, v%d" % (T + 23, sTMP, T + 23))
e("v_mov_b32 v%d, %d" % (T + 14, L_EPOCH))
stamp("pre", (3,))
w_dma(sWM, 0, L_B)
stamp("w1iss", (3,))
e("s_waitcnt lgkmcnt(0)")
e("s_barrier")
stamp("bar0", (1,2,3))
e("s_waitcnt vmcnt(6)")
stamp("dst", (1,3))
e("v_and_b32 v%d, 255, v%d" % (T + 8, T + 10))
e("v_lshlrev_b32 v%d, 2, v%d" % (T + 2, T + 8))
e("ds_add_rtn_u32 v%d, v%d, v%d offset:%d" % (T + 6, T + 2, vONE, L_CNT))
e("s_cmp_ge_u32 s%d, 2" % sW)
e("s_cbranch_scc1 L_rank1")
e("s_mov_b64 exec, %s" % sr(sQ2))
e("v_and_b32 v%d, 255, v%d" % (T + 9, T + 12))
e("v_lshlrev_b32 v%d, 2, v%d" % (T + 2, T + 9))
e("ds_add_rtn_u32 v%d, v%d, v%d offset:%d" % (T + 7, T + 2, vONE, L_CNT))
make_rec(T + 12, T + 13, T + 5, T, T + 1)
e("v_add_u32 v%d, 512, v0" % T)
e("v_lshl_or_b32 v%d, v%d, 20, v%d" % (T + 5, T, T + 5))
e("s_mov_b64 exec, -1")
make_rec(T + 10, T + 11, T + 4, T, T + 1)
e("v_lshl_or_b32 v%d, v0, 20, v%d" % (T + 4, T + 4))
e("s_mov_b64 exec, %s" % sr(sQ2))
e("s_waitcnt lgkmcnt(0)")
def put_rec(b, r, rec):
    e("v_cmp_gt_u32 vcc, 24, v%d" % r)
    e("v_mul_u32_u24 v%d, 11, v%d" % (T, r))
    e("v_lshrrev_b32 v%d, 5, v%d" % (T, T))
    e("v_add_lshl_u32 v%d, v%d, v%d, 2" % (T, T, r))
    e("v_lshl_add_u32 v%d, v%d, 7, v%d" % (T, b, T))
    e("s_and_b64 exec, exec, vcc")
    e("ds_write_b32 v%d, v%d" % (T, rec))
    e("s_mov_b64 exec, -1")
put_rec(T + 9, T + 7, T + 5)
e("s_branch L_rank2")
lab("L_rank1")
make_rec(T + 10, T + 11, T + 4, T, T + 1)
e("v_lshl_or_b32 v%d, v0, 20, v%d" % (T + 4, T + 4))
e("s_cmp_lg_u32 s%d, 2" % sW)
e("s_cbranch_scc1 L_rank1b")
e("ds_write_b32 v%d, v%d" % (T + 14, T + 15))
lab("L_rank1b")
e("s_waitcnt lgkmcnt(0)")
lab("L_rank2")
put_rec(T + 8, T + 6, T + 4)
e("s_waitcnt lgkmcnt(0)")
stamp("rank", (3,))
e("s_barrier")
stamp("barA", (3,))
e("ds_read_b32 v%d, v%d" % (T + 9, T + 14))
e("ds_read_b128 %s, v%d" % (vr(T, 4), T + 19))
e("ds_read_b32 v%d, v%d offset:%d" % (T + 13, T + 22, L_CNT))
e("ds_read_b128 %s, v%d offset:32" % (vr(T + 4, 4), T + 19))
e("v_add_u32 v%d, 0x200000, v%d" % (T + 15, T + 23))
e("s_waitcnt lgkmcnt(3)")
e("v_readfirstlane_b32 s%d, v%d" % (sE1, T + 9))
e("s_add_u32 s%d, s%d, 1" % (sE1, sE1))
e("s_mul_i32 s%d, s%d, 0x9e3779b1" % (sT, sE1))
e("s_waitcnt lgkmcnt(2)")
e("v_mov_b32 v%d, s%d" % (T + 3, sT))
e("global_store_dwordx4 v%d, %s, %s sc1" % (T + 23, vr(T, 4), sr(sWS)))
e("s_waitcnt lgkmcnt(0)")
e("v_cmp_le_u32 vcc, 6, v%d" % (T + 13))
e("v_mov_b32 v%d, s%d" % (T + 7, sT))
e("s_mov_b32 s%d, 0" % sLVL)
e("s_and_b64 exec, vcc, -1")
e("s_cbranch_execz L_pub1")
e("global_store_dwordx4 v%d, %s, %s sc1" % (T + 15, vr(T + 4, 4), sr(sWS)))
e("v_cmp_le_u32 vcc, 12, v%d" % (T + 13))
e("s_and_b64 exec, exec, vcc")
e("s_cbranch_execnz L_pub_more")
e("s_mov_b32 s%d, 1" % sLVL)
lab("L_pub1")
e("s_mov_b64 exec, -1")
stamp("pub", (1,2,3,4))
e("v_and_b32 v%d, 31, v%d" % (T, vL))
e("v_lshrrev_b32 v%d, 5, v%d" % (T + 1, vL))
e("v_bfe_u32 v%d, v%d, 2, 2" % (T + 2, vL))
e("v_xor_b32 v%d, v%d, v%d" % (T + 3, T + 1, T + 2))
e("v_lshlrev_b32 v%d, 4, v%d" % (T + 3, T + 3))
e("v_lshl_add_u32 v%d, v%d, 6, v%d" % (vAS0, T, T + 3))
e("v_xor_b32 v%d, 32, v%d" % (vAS1, vAS0))
e("v_lshlrev_b32 v%d, 1, v%d" % (T + 3, T + 1))
e("v_xor_b32 v%d, v%d, v%d" % (T + 3, T + 3, T + 2))
e("v_lshlrev_b32 v%d, 4, v%d" % (T + 3, T + 3))
e("v_lshl_add_u32 v%d, v%d, 6, v%d" % (vTW, T, T + 3))
e("v_lshl_add_u32 v%d, v%d, 3, v%d" % (T + 3, T + 1, T + 2))
e("s_lshl_b32 s%d, s%d, 13" % (sTMP, sCB))
e("v_lshl_add_u32 v%d, v%d, 6, s%d" % (T + 3, T + 3, sTMP))
e("v_bfe_u32 v%d, v%d, 4, 1" % (T + 4, vL))
e("v_and_b32 v%d, 3, v%d" % (T + 5, vL))
e("v_lshl_add_u32 v%d, v%d, 2, v%d" % (T + 6, T + 4, T + 5))
e("v_lshl_add_u32 v%d, v%d, 3, v%d" % (vWN, T + 6, T + 3))
e("v_and_b32 v%d, 1, v%d" % (T + 6, vL))
e("v_bfe_u32 v%d, v%d, 1, 1" % (T + 7, vL))
e("v_lshl_add_u32 v%d, v%d, 1, v%d" % (T + 9, T + 4, T + 7))
e("v_lshl_add_u32 v%d, v%d, 2, v%d" % (T + 14, T + 6, T + 9))
e("v_lshl_add_u32 v%d, v%d, 3, v%d" % (vWP, T + 14, T + 3))
e("v_mov_b32 v%d, %d" % (vCB, CS))
e("s_mul_i32 s%d, s%d, %d" % (sTMP, sSB, 4 * CS))
e("v_lshl_add_u32 v%d, v%d, 4, s%d" % (T + 3, T, sTMP))
e("v_mad_u32_u24 v%d, v%d, v%d, v%d" % (vEB, T + 1, vCB, T + 3))
e("v_lshl_add_u32 v%d, v%d, 2, v%d" % (T + 3, T + 1, T + 2))
e("v_lshl_add_u32 v%d, v%d, 4, s%d" % (T + 3, T + 3, sTMP))
e("v_lshl_add_u32 v%d, v%d, 3, v%d" % (T + 3, T + 6, T + 3))
e("v_mad_u32_u24 v%d, v%d, v%d, v%d" % (vSL, T + 9, vCB, T + 3))
srd(sPD, sWS, 256, N, W_P)
e("s_mov_b32 s%d, 0x%x" % (sC1, NLOG2E)); e("s_mov_b32 s%d, 0x%x" % (sC1 + 1, NLOG2E))
e("s_cmp_eq_u32 s%d, 2" % sLVL)
e("s_cbranch_scc1 L_pw4")
e("s_cmp_eq_u32 s%d, 1" % sLVL)
e("s_cbranch_scc1 L_pw2")
if OPT["stamps"] == 3: e("s_waitcnt vmcnt(5)")
else: e("s_waitcnt vmcnt(1)")
lab("L_pw2")
if OPT["stamps"] == 3:
    e("s_waitcnt vmcnt(6)")
    stamp("xland", (3,))
    e("s_cbranch_scc1 L_pw3")
    e("s_waitcnt vmcnt(1)")
    lab("L_pw3")
e("s_waitcnt vmcnt(2)")
lab("L_pw4")
e("s_waitcnt vmcnt(4)")
stamp("w1land", (3,))
e("s_barrier")
stamp("barB", (1,2,3))
p_compute(None, True)
stamp("pst", (2,))
w_dma(sWU, 128, L_A)
stamp("wu2iss", (2,4))
if OPT["stamps"] == 4: e("s_waitcnt vmcnt(0)"); stamp("wu2land", (4,))
reset_lists("a")
stamp("reset", (2,4))
w_dma(sWM, 128, L_B)
w_dma(sWU, 0, L_C)
stamp("wiss", (2,4))
srd(sED, sEA, 0, E * 8)
e("v_mov_b32 v%d, 0x3f80" % vBF1)
e("s_mov_b32 s%d, 0x%x" % (sC2, NLN2)); e("s_mov_b32 s%d, 0x%x" % (sC2 + 1, NLN2))
e("s_mov_b32 s%d, 0xaaaaaaaa" % sODD); e("s_mov_b32 s%d, 0xaaaaaaaa" % (sODD + 1))
e("s_lshl_b32 s%d, s%d, 11" % (sRB, sW))
e("s_add_u32 s%d, s%d, 0x%x" % (sRB, sRB, L_RING))
e("v_add_u32 v%d, s%d, v%d" % (vP0, sRB, vAS0))
e("v_add_u32 v%d, s%d, v%d" % (vP1, sRB, vAS1))
for j in range(6): e("v_mov_b32 v%d, 0" % (SA + j)); e("v_mov_b32 v%d, 0" % (OA + j))
RA, RB_, RN, RE, EV = PA, PA + 4, OA, SA, EE
vSWP, vCHB, vFLG = T + 16, T + 17, T + 18
e("s_lshl_b32 s%d, s2, 13" % sTMP)
e("s_add_u32 s%d, s%d, 0x%x" % (sTMP, sTMP, W_SLOT))
e("v_lshl_add_u32 v%d, v0, 4, s%d" % (vSWP, sTMP))
e("v_lshrrev_b32 v%d, 1, v0" % vCHB)
e("s_and_b32 s%d, s2, 7" % sTMP)
e("s_lshl_b32 s%d, s%d, 13" % (sTMP, sTMP))
e("s_add_u32 s%d, s%d, 0x%x" % (sTMP, sTMP, W_FLAG))
e("v_lshl_add_u32 v%d, v%d, 5, s%d" % (vFLG, vCHB, sTMP))
e("v_mul_u32_u24 v%d, %d, v%d" % (vCHB, CH, vCHB))
e("s_mov_b32 s%d, 0" % sLVL)
e("s_mov_b32 s%d, 0" % sSPIN)
e("s_mov_b32 s%d, 0" % sMODE)
e("s_mov_b64 %s, -1" % sr(sNA))
e("v_add_u32 v%d, 0x200000, v%d" % (T + 19, vSWP))
e("s_lshl_b32 s%d, s2, 5" % sTMP)
e("s_add_u32 s%d, s%d, 0x%x" % (sTMP, sTMP, W_FLAG))
e("v_lshl_add_u32 v%d, v%d, 13, s%d" % (T + 2, vL, sTMP))
e("v_mov_b32 v%d, s%d" % (T, sT))
e("v_not_b32 v%d, v%d" % (T + 1, T))
e("v_lshlrev_b32 v%d, 4, v%d" % (T + 3, vL))
e("v_add_u32 v%d, 0x10000, v%d" % (T + 3, T + 3))
e("s_mov_b32 m0, %d" % L_CNT)
e("s_waitcnt vmcnt(8) lgkmcnt(0)")
stamp("pack", (2,))
e("s_barrier")
e("s_cmp_lg_u32 s%d, 0" % sW)
e("s_cbranch_scc1 L_noflag")
e("s_mov_b64 exec, 0xff")
e("global_store_dwordx2 v%d, %s, %s sc1" % (T + 2, vr(T, 2), sr(sWS)))
e("s_mov_b64 exec, -1")
e("global_load_lds_dwordx4 v%d, %s" % (T + 3, sr(sWM)))
lab("L_noflag")
stamp("flag", (1,2,4))
e("global_load_dwordx4 %s, v%d, %s sc1" % (vr(RA, 4), vSWP, sr(sWS)))
e("global_load_dwordx4 %s, v%d, %s sc1" % (vr(RB_, 4), T + 19, sr(sWS)))
w_frag(W1F, vWP, L_A)
e("v_and_b32 v%d, 31, v%d" % (T + 10, vL))
e("v_lshrrev_b32 v%d, 5, v%d" % (T + 11, vL))
e("v_lshlrev_b32 v%d, 3, v%d" % (T + 11, T + 11))
e("v_sub_u32 v%d, v%d, v%d" % (T + 10, T + 10, T + 11))
e("v_and_b32 v%d, 1, v%d" % (T + 11, vL))
e("v_lshlrev_b32 v%d, 4, v%d" % (T + 11, T + 11))
e("v_lshlrev_b32 v%d, v%d, v%d" % (T + 11, T + 11, vBF1))
e("v_ashrrev_i32 v%d, 1, v%d" % (T + 10, T + 10))
for j in range(8):
    e("v_cmp_eq_u32 vcc, %d, v%d" % ((j & 3) + (j >> 2) * 8, T + 10))
    nop(2)
    e("v_cndmask_b32_e64 v%d, 0, v%d, vcc" % (ID + j, T + 11))
if OPT["force_mode"] == 2:
    e("s_branch L_timeout")
e("s_branch L_pollC")
lab("L_level")
e("s_mov_b64 %s, %s" % (sr(sPA), sr(sNA))); e("s_mov_b64 %s, %s" % (sr(sPB), sr(sNA)))
e("v_add_u32 v%d, 0x200000, v%d" % (T + 19, vSWP))
lab("L_poll")
e("s_mov_b64 exec, %s" % sr(sPA))
e("s_cbranch_execz L_pollB")
e("global_load_dwordx4 %s, v%d, %s sc1" % (vr(RA, 4), vSWP, sr(sWS)))
lab("L_pollB")
e("s_mov_b64 exec, %s" % sr(sPB))
e("s_cbranch_execz L_pollC")
e("global_load_dwordx4 %s, v%d, %s sc1" % (vr(RB_, 4), T + 19, sr(sWS)))
lab("L_pollC")
e("s_mov_b64 exec, %s" % sr(sNA))
e("s_add_u32 s%d, s%d, 1" % (sSPIN, sSPIN))
e("s_waitcnt vmcnt(0)")
e("v_or3_b32 v%d, v%d, v%d, v%d" % (T, RA, RA + 1, RA + 2))
e("v_or3_b32 v%d, v%d, v%d, v%d" % (T + 1, RB_, RB_ + 1, RB_ + 2))
e("v_cmp_eq_u32 %s, s%d, v%d" % (sr(sVA), sT, RA + 3))
e("v_cmp_eq_u32 %s, s%d, v%d" % (sr(sVB), sT, RB_ + 3))
e("v_cmp_gt_u32 %s, 2.0, v%d" % (sr(sPA), T))
e("v_cmp_gt_u32 %s, 2.0, v%d" % (sr(sPB), T + 1))
e("v_cmp_ne_u32 vcc, 0x%x, v%d" % (SENT, RA + 2))
e("s_and_b64 %s, %s, %s" % (sr(sVA), sr(sVA), sr(sPA)))
e("s_and_b64 %s, %s, %s" % (sr(sVB), sr(sVB), sr(sPB)))
e("s_and_b64 %s, vcc, %s" % (sr(sNB), sr(sVA)))
e("s_and_b64 %s, %s, %s" % (sr(sNB), sr(sNB), sr(sODD)))
e("s_lshr_b64 %s, %s, 1" % (sr(sQ), sr(sNB)))
e("s_or_b64 %s, %s, %s" % (sr(sNB), sr(sNB), sr(sQ)))
e("s_andn2_b64 %s, %s, %s" % (sr(sPA), sr(sNA), sr(sVA)))
e("s_and_b64 %s, %s, %s" % (sr(sQ), sr(sPA), sr(sODD)))
e("s_or_b64 %s, %s, %s" % (sr(sPB), sr(sNB), sr(sQ)))
e("s_lshr_b64 %s, %s, 1" % (sr(sQ), sr(sQ)))
e("s_or_b64 %s, %s, %s" % (sr(sPB), sr(sPB), sr(sQ)))
e("s_andn2_b64 %s, %s, %s" % (sr(sPB), sr(sPB), sr(sVB)))
e("s_or_b64 %s, %s, %s" % (sr(sQ), sr(sPA), sr(sPB)))
e("s_cbranch_scc0 L_got")
e("s_cmp_lt_u32 s%d, %d" % (sSPIN, OPT["spin"]))
e("s_cbranch_scc1 L_poll")
e("s_branch L_timeout")
lab("L_got")
e("s_mov_b64 exec, -1")
e("global_load_dwordx2 %s, v%d, %s sc1" % (vr(T + 22, 2), vFLG, sr(sWS)))
stamp("got", (1,4))
recs = [RA, RA + 1, RA + 2, RB_, RB_ + 1, RB_ + 2]
for k, x in enumerate(recs):
    e("v_cmp_ne_u32 vcc, 0x%x, v%d" % (SENT, x))
    e("s_and_b64 %s, vcc, %s" % (sr(sM + 2 * k), sr(sNA if k < 3 else sNB)))
for k, x in enumerate(recs):
    e("s_mov_b64 exec, %s" % sr(sM + 2 * k))
    if k in (2, 3): e("s_cbranch_execz L_ra%d" % (2 if k < 3 else 5))
    rec_a(x, RN + k, None, None)
    e("v_lshrrev_b32 v%d, 20, v%d" % (RE + k, x))
    e("v_add_lshl_u32 v%d, v%d, v%d, 3" % (RE + k, RE + k, vCHB))
    if k in (2, 5): lab("L_ra%d" % k)
e("s_waitcnt lgkmcnt(0)")
e("s_and_b64 %s, %s, %s" % (sr(sNA), sr(sM + 10), sr(sODD)))
for k, x in enumerate(recs):
    e("s_mov_b64 exec, %s" % sr(sM + 2 * k))
    e("s_cbranch_execz L_rb%d" % (2 if k < 3 else 5))
    e("v_cmp_gt_u32 vcc, %d, v%d" % (CAP, RN + k))
    e("s_and_b64 exec, exec, vcc")
    e("s_mov_b64 %s, exec" % sr(sM + 2 * k))
    rec_b(x, RN + k, T, T + 1)
    if k in (2, 5): lab("L_rb%d" % k)
e("s_mov_b64 exec, -1")
e("s_cmp_lg_u64 %s, 0" % sr(sNA))
e("s_cbranch_scc1 L_nextlevel")
lab("L_flags")
e("s_waitcnt vmcnt(0)")
e("v_not_b32 v%d, v%d" % (T + 23, T + 23))
e("v_cmp_ne_u32 vcc, s%d, v%d" % (sT, T + 22))
e("v_cmp_ne_u32 %s, s%d, v%d" % (sr(sQ), sT, T + 23))
e("s_or_b64 exec, vcc, %s" % sr(sQ))
e("s_cbranch_execz L_flagsok")
e("global_load_dwordx2 %s, v%d, %s sc1" % (vr(T + 22, 2), vFLG, sr(sWS)))
e("s_add_u32 s%d, s%d, 1" % (sSPIN, sSPIN))
e("s_cmp_lt_u32 s%d, %d" % (sSPIN, OPT["spin"]))
e("s_cbranch_scc1 L_flags")
lab("L_timeout")
e("s_mov_b32 s%d, 2" % sMODE)
lab("L_setmode")
e("s_mov_b64 exec, -1")
e("s_waitcnt vmcnt(0)")
e("v_mov_b32 v%d, %d" % (T, L_MODE))
e("v_mov_b32 v%d, s%d" % (T + 1, sMODE))
e("ds_max_u32 v%d, v%d" % (T, T + 1))
e("s_branch L_barE")
lab("L_flagsok")
e("s_mov_b64 exec, -1")
e("s_cmp_lg_u32 s%d, 0" % sMODE)
e("s_cbranch_scc1 L_setmode")
def e_load(tag):
    for k in range(6):
        e("s_mov_b64 exec, %s" % sr(sM + 2 * k))
        e("s_cbranch_execz L_el%s%d" % (tag, k))
        e("buffer_load_dwordx2 %s, v%d, %s, 0 offen" % (vr(EV + 2 * k, 2), RE + k, sr(sED, 4)))
        lab("L_el%s%d" % (tag, k))
    e("s_mov_b64 exec, -1")
def e_write(tag):
    for k in range(6):
        e("s_mov_b64 exec, %s" % sr(sM + 2 * k))
        e("ds_write_b64 v%d, %s offset:%d" % (RN + k, vr(EV + 2 * k, 2), 3 * CS))
    e("s_mov_b64 exec, -1")
e_load("a")
lab("L_barE")
e("s_waitcnt lgkmcnt(0)")
e("s_barrier")
stamp("barE", (1,4))
e("v_mov_b32 v%d, %d" % (T, L_CNT2))
e("ds_read_b96 %s, v%d" % (vr(T + 4, 3), T))
e("s_waitcnt lgkmcnt(0)")
e("v_max_u32 v%d, v%d, v%d" % (T + 7, T + 4, T + 5))
e("v_readfirstlane_b32 s%d, v%d" % (sMODE, T + 6))
e("v_readfirstlane_b32 s%d, v%d" % (sTMP, T + 7))
if OPT["force_mode"] == 1:
    e("s_mov_b32 s%d, 1" % sMODE)
e("s_cmp_gt_u32 s%d, %d" % (sTMP, CAP))
e("s_cselect_b32 s%d, 1, 0" % sTMP)
e("s_max_u32 s%d, s%d, s%d" % (sMODE, sMODE, sTMP))
e("s_cmp_lg_u32 s%d, 0" % sMODE)
e("s_cbranch_scc1 L_slow")
lab("L_flush")
e("v_readfirstlane_b32 s%d, v%d" % (sNT, T + 4))
e("v_readfirstlane_b32 s%d, v%d" % (sTMP, T + 5))
e("s_cmp_lg_u32 s%d, 0" % sSB)
e("s_cselect_b32 s%d, s%d, s%d" % (sNT, sTMP, sNT))
e("s_min_u32 s%d, s%d, %d" % (sNT, sNT, CAP))
e("s_add_u32 s%d, s%d, 31" % (sNT, sNT))
e("s_lshr_b32 s%d, s%d, 5" % (sNT, sNT))
e("s_mul_i32 s%d, s%d, %d" % (sTMP, sSB, LSTR))
e("s_add_u32 s%d, s%d, %d" % (sTMP, sTMP, L_LIST))
e("v_and_b32 v%d, 60, v%d" % (vLI, vL))
e("v_add_u32 v%d, s%d, v%d" % (vLI, sTMP, vLI))
for t in range(R):
    e("ds_read2_b32 %s, v%d offset0:%d offset1:%d" % (vr(T + 2 * t, 2), vLI, 32 * t, 32 * t + 16))
e("v_mov_b32 v%d, v%d" % (vOH, vEB))
e("v_mov_b32 v%d, v%d" % (vS, vSL))
def dma(slot):
    setm0(sRB, slot * SLOT); nop(1)
    e(("buffer_load_dwordx4 %s, %s, 0 idxen offen " + ("sc1 " if OPT["gsc1"] else "") + "lds") % (vr(vI0, 2), sr(sPD, 4)))
    setm0(sRB, slot * SLOT + 1024); nop(1)
    e(("buffer_load_dwordx4 %s, %s, 0 idxen offen " + ("sc1 " if OPT["gsc1"] else "") + "lds") % (vr(vI1, 2), sr(sPD, 4)))
for t in range(R):
    if t == OPT["t01"]:
        e("s_cmp_lg_u32 s%d, 0" % sMODE)
        e("s_cbranch_scc1 L_noew")
        qu_compute()
        stamp("U", (1,))
        e("s_waitcnt vmcnt(%d)" % (2 * t))
        e_write("a")
        e("s_waitcnt lgkmcnt(0)")
        e("s_barrier")
        lab("L_noew")
        stamp("barF", (1,))
    e("s_waitcnt lgkmcnt(%d)" % (R - 1 - t))
    e("v_mov_b32 v%d, v%d" % (vI0, T + 2 * t)); e("v_mov_b32 v%d, v%d" % (vI1, T + 2 * t + 1))
    dma(t)
e("s_cmp_eq_u32 s%d, 0" % sNT)
e("s_cbranch_scc1 L_flush_done")
def rd_idx(t):
    e("ds_read_b32 v%d, v%d offset:%d" % (vI0, vLI, 128 * t))
    e("ds_read_b32 v%d, v%d offset:%d" % (vI1, vLI, 128 * t + 64))
def rd_oh(t):
    e("ds_read_b128 %s, v%d offset:%d" % (vr(OA, 4), vOH, 512 * t))
    e("ds_read_b128 %s, v%d offset:%d" % (vr(OA + 4, 4), vOH, 512 * t + 2 * CS))
def rd_p(slot):
    e("ds_read_b128 %s, v%d offset:%d" % (vr(PA, 4), vP0, SLOT * slot))
    e("ds_read_b128 %s, v%d offset:%d" % (vr(PA + 4, 4), vP1, SLOT * slot))
def rd_s(t):
    for q in range(4): e("ds_read_b64_tr_b16 %s, v%d offset:%d" % (vr(SA + 2 * q, 2), vS, 512 * t + 128 * q))
rd_oh(0); rd_idx(R)
for j in range(8): e("v_mov_b32 v%d, 0" % (MSG + j)); e("v_mov_b32 v%d, 0" % (SA + j))
e("s_waitcnt lgkmcnt(2)")
mfma(Y0, OA, QW, "0"); mfma(Y0, OA + 4, QW + 4, Y0)
rd_oh(1)
e("s_waitcnt vmcnt(%d)" % (2 * (R - 1)))
rd_p(0)
e("s_waitcnt lgkmcnt(0)")
mfma(Y0, PA, ID, Y0); mfma(Y0, PA + 4, ID + 4, Y0)
dma(0)
rd_idx(R + 1)
e("s_waitcnt vmcnt(%d)" % (2 * (R - 1)))
rd_p(1)
e("s_mov_b32 s%d, 0" % sIT)
stamp("loop", (1,))
nop(4)
lab("L_loop")
for u in range(R):
    Yc, Yn = (Y0, Y1) if u % 2 == 0 else (Y1, Y0)
    ex = lambda a, b: [e("v_exp_f32 v%d, v%d" % (EE + j, Yc + j)) for j in range(a, b)]
    rc = lambda a, b: [e("v_rcp_f32 v%d, v%d" % (EE + j, EE + j)) for j in range(a, b)]
    e("s_waitcnt lgkmcnt(0)")
    mfma(Yn, PA, ID, "0")
    setm0(sRB, ((u + 1) % R) * SLOT)
    ex(0, 2)
    e(("buffer_load_dwordx4 %s, %s, 0 idxen offen " + ("sc1 " if OPT["gsc1"] else "") + "lds") % (vr(vI0, 2), sr(sPD, 4)))
    setm0(sRB, ((u + 1) % R) * SLOT + 1024)
    ex(2, 4)
    mfma(Yn, PA + 4, ID + 4, Yn)
    e(("buffer_load_dwordx4 %s, %s, 0 idxen offen " + ("sc1 " if OPT["gsc1"] else "") + "lds") % (vr(vI1, 2), sr(sPD, 4)))
    ex(4, 8)
    mfma(Yn, OA, QW, Yn)
    ex(8, 16)
    for j in range(8): e("v_pk_add_f32 %s, %s, 1.0 op_sel_hi:[1,0]" % (vr(EE + 2 * j, 2), vr(EE + 2 * j, 2)))
    mfma(Yn, OA + 4, QW + 4, Yn)
    rc(0, 4)
    mfma(AGG, MSG, SA, AGG)
    rc(4, 8)
    mfma(AGG, MSG + 4, SA + 4, AGG)
    rd_idx(u + 2 + R)
    rc(8, 10)
    rd_oh(u + 2)
    rc(10, 12)
    rd_s(u)
    rc(12, 14)
    e("s_waitcnt vmcnt(%d)" % (2 * (R - 1)))
    rd_p((u + 2) % R)
    rc(14, 16)
    e("s_add_u32 s%d, s%d, 1" % (sIT, sIT))
    for j in range(8): e("v_pk_mul_f32 %s, %s, %s" % (vr(EE + 2 * j, 2), vr(EE + 2 * j, 2), vr(Yc + 2 * j, 2)))
    e("s_cmp_ge_u32 s%d, s%d" % (sIT, sNT))
    for j in range(8): e("v_cvt_pk_bf16_f32 v%d, v%d, v%d" % (MSG + j, EE + 2 * j, EE + 2 * j + 1))
    if u < R - 1:
        e("s_cbranch_scc1 L_loop_end")
    else:
        e("v_add_u32 v%d, %d, v%d" % (vOH, 512 * R, vOH))
        e("v_add_u32 v%d, %d, v%d" % (vS, 512 * R, vS))
        e("v_add_u32 v%d, %d, v%d" % (vLI, 128 * R, vLI))
        e("s_cbranch_scc0 L_loop")
lab("L_loop_end")
e("s_waitcnt lgkmcnt(0)")
nop(1)
mfma(AGG, MSG, SA, AGG)
mfma(AGG, MSG + 4, SA + 4, AGG)
lab("L_flush_done")
e("s_cmp_lg_u32 s%d, 0" % sMODE)
e("s_cbranch_scc1 L_slow_ret")
lab("L_epi")
stamp("epi", (1,))
e("v_and_b32 v%d, 0x13, v%d" % (T, vL))
e("v_bfe_u32 v%d, v%d, 2, 1" % (T + 1, vL))
e("v_lshl_or_b32 v%d, v%d, 3, v%d" % (T, T + 1, T))
e("v_bfe_u32 v%d, v%d, 3, 1" % (T + 1, vL))
e("v_lshl_or_b32 v%d, v%d, 2, v%d" % (T, T + 1, T))
e("v_bfe_u32 v%d, v%d, 2, 2" % (T + 1, T))
e("v_lshlrev_b32 v%d, 4, v%d" % (T + 1, T + 1))
e("v_lshl_add_u32 v%d, v%d, 6, v%d" % (T, T, T + 1))
e("v_lshrrev_b32 v%d, 5, v%d" % (T + 1, vL))
e("v_lshl_add_u32 v%d, v%d, 3, v%d" % (T, T + 1, T))
e("v_add_u32 v%d, s%d, v%d" % (T, sRB, T))
for i in range(1, 4): e("v_xor_b32 v%d, %d, v%d" % (T + i, 16 * i, T))
for j in range(8): e("v_pk_mul_f32 %s, %s, %s" % (vr(AGG + 2 * j, 2), vr(AGG + 2 * j, 2), sr(sC2)))
for j in range(8): e("v_cvt_pk_bf16_f32 v%d, v%d, v%d" % (MSG + j, AGG + 2 * j, AGG + 2 * j + 1))
e("s_waitcnt vmcnt(0)")
for i in range(4): e("ds_write_b64 v%d, %s" % (T + i, vr(MSG + 2 * i, 2)))
e("s_waitcnt lgkmcnt(0)")
e("s_barrier")
tile_frag(XF, L_RING, 2048)
for j in range(8):
    e("s_waitcnt lgkmcnt(%d)" % (7 - j))
    mfma(U, W1F + 4 * j, XF + 4 * j, U)
node_idx(2)
tr_addr(sRB, SLOT)
srd(sXD, sOUT, 256, N)
for j in range(8): e("v_pk_mul_f32 %s, %s, %s" % (vr(EE + 2 * j, 2), vr(U + 2 * j, 2), sr(sC1)))
for j in range(16): e("v_exp_f32 v%d, v%d" % (EE + j, EE + j))
for j in range(8): e("v_pk_add_f32 %s, %s, 1.0 op_sel_hi:[1,0]" % (vr(EE + 2 * j, 2), vr(EE + 2 * j, 2)))
for j in range(16): e("v_rcp_f32 v%d, v%d" % (EE + j, EE + j))
for j in range(8): e("v_pk_mul_f32 %s, %s, %s" % (vr(EE + 2 * j, 2), vr(EE + 2 * j, 2), vr(U + 2 * j, 2)))
for j in range(8): e("v_cvt_pk_bf16_f32 v%d, v%d, v%d" % (MSG + j, EE + 2 * j, EE + 2 * j + 1))
tr_store(MSG, sXD, "")
e("s_or_b32 s%d, s2, s%d" % (sTMP, sW))
e("s_cbranch_scc1 L_noep")
e("v_mov_b32 v%d, 0" % (T + 1))
e("v_mov_b32 v%d, s%d" % (T + 2, sE1))
e("s_mov_b64 exec, 1")
e("global_store_dword v%d, v%d, %s sc1" % (T + 1, T + 2, sr(sWS)))
e("s_mov_b64 exec, -1")
lab("L_noep")
if OPT["stamps"]:
    e("s_mov_b64 exec, -1")
    e("s_waitcnt vmcnt(0)")
    stamp("end", (1,2,3,4))
    e("v_mov_b32 v%d, s%d" % (vST + 14, sSPIN)); e("v_mov_b32 v%d, s%d" % (vST + 15, sNT))
    e("s_lshl_b32 s%d, s2, 3" % sTMP); e("s_add_u32 s%d, s%d, s%d" % (sTMP, sTMP, sW))
    e("s_lshl_b32 s%d, s%d, 6" % (sTMP, sTMP)); e("s_add_u32 s%d, s%d, 0x%x" % (sTMP, sTMP, W_STAMP))
    e("v_mov_b32 v%d, s%d" % (T, sTMP))
    e("s_mov_b64 exec, 1")
    for j in range(4): e("global_store_dwordx4 v%d, %s, %s offset:%d" % (T, vr(vST + 4 * j, 4), sr(sWS), 16 * j))
lab("L_end")
e("s_endpgm")

lab("L_pub_more")
e("ds_read_b128 %s, v%d offset:64" % (vr(MSG, 4), T + 19))
e("ds_read_b128 %s, v%d offset:96" % (vr(MSG + 4, 4), T + 19))
e("v_add_u32 v%d, 0x400000, v%d" % (T + 10, T + 23))
e("v_add_u32 v%d, 0x600000, v%d" % (T + 11, T + 23))
e("s_waitcnt lgkmcnt(0)")
e("v_mov_b32 v%d, s%d" % (MSG + 3, sT))
e("v_mov_b32 v%d, s%d" % (MSG + 7, sT))
e("global_store_dwordx4 v%d, %s, %s sc1" % (T + 10, vr(MSG, 4), sr(sWS)))
e("global_store_dwordx4 v%d, %s, %s sc1" % (T + 11, vr(MSG + 4, 4), sr(sWS)))
e("s_mov_b32 s%d, 2" % sLVL)
e("s_branch L_pub1")

lab("L_nextlevel")
e("s_cmp_lg_u32 s%d, 0" % sLVL)
e("s_cbranch_scc0 L_nl1")
e("s_mov_b32 s%d, 1" % sMODE)
e("s_branch L_flags")
lab("L_nl1")
e_load("b")
e("s_waitcnt vmcnt(0)")
e_write("b")
e("s_lshr_b64 %s, %s, 1" % (sr(sQ), sr(sNA)))
e("s_or_b64 %s, %s, %s" % (sr(sNA), sr(sNA), sr(sQ)))
e("s_mov_b32 s%d, 1" % sLVL)
e("v_add_u32 v%d, 0x400000, v%d" % (vSWP, vSWP))
e("s_waitcnt lgkmcnt(0)")
e("s_branch L_level")

lab("L_slow")
e("s_waitcnt vmcnt(0)")
qu_compute()
e("s_barrier")
srd(sDD, sDST, 0, E * 4)
srd(sSD, sSRC, 0, E * 4)
e("s_cmp_lg_u32 s%d, 2" % sMODE)
e("s_cbranch_scc1 L_scan")
for j in range(4): e("v_mov_b32 v%d, -1" % (T + j))
e("v_lshrrev_b32 v%d, 1, v0" % (T + 10))
e("v_and_b32 v%d, 1, v0" % (T + 11))
e("v_lshlrev_b32 v%d, 4, v%d" % (T + 11, T + 11))
e("s_lshl_b32 s%d, s2, 5" % sTMP)
e("s_add_u32 s%d, s%d, 0x%x" % (sTMP, sTMP, W_SLOT))
e("v_lshl_add_u32 v%d, v%d, 13, v%d" % (T + 14, T + 10, T + 11))
e("v_add_u32 v%d, s%d, v%d" % (T + 14, sTMP, T + 14))
for p in range(4):
    e("global_store_dwordx4 v%d, %s, %s sc1" % (T + 14, vr(T, 4), sr(sWS)))
    e("v_add_u32 v%d, 0x200000, v%d" % (T + 14, T + 14))
e("s_lshl_b32 s%d, s2, 5" % sTMP)
e("s_add_u32 s%d, s%d, 0x%x" % (sTMP, sTMP, W_FLAG))
e("v_and_b32 v%d, 7, v0" % (T + 10))
e("v_lshl_add_u32 v%d, v%d, 13, s%d" % (T + 10, T + 10, sTMP))
e("global_store_dwordx2 v%d, %s, %s sc1" % (T + 10, vr(T, 2), sr(sWS)))
w_dma(sWM, 0, L_C)
e("s_waitcnt vmcnt(0)")
e("s_barrier")
w_frag(WT, vWP, L_C)
e("s_mov_b32 s%d, 0" % sCP)
lab("L_pall")
e("s_barrier")
node_idx(sCP)
x_dma()
e("s_waitcnt vmcnt(0)")
e("s_barrier")
tile_frag(XF, L_X, 2048)
e("s_waitcnt lgkmcnt(0)")
p_compute(WT)
e("s_add_u32 s%d, s%d, 1" % (sCP, sCP))
e("s_cmp_lt_u32 s%d, 256" % sCP)
e("s_cbranch_scc1 L_pall")
e("s_waitcnt vmcnt(0)")
lab("L_scan")
e("s_mov_b32 s%d, 0" % sSTEP)
e("s_mov_b64 %s, 0" % sr(sPEND))
vR, vE = XF, XF + 1
lab("L_scan_reset")
e("s_barrier")
reset_lists("b")
e("s_waitcnt lgkmcnt(0)")
e("s_barrier")
e("s_cmp_lg_u32 s%d, 3" % sMODE)
e("s_cbranch_scc0 L_scan_retry")
lab("L_scan_step")
e("v_add_u32 v%d, s%d, v0" % (vE, sSTEP))
e("v_lshlrev_b32 v%d, 2, v%d" % (T + 2, vE))
e("buffer_load_dword v%d, v%d, %s, 0 offen" % (T + 10, T + 2, sr(sDD, 4)))
e("buffer_load_dword v%d, v%d, %s, 0 offen" % (T + 11, T + 2, sr(sSD, 4)))
e("s_add_u32 s%d, s%d, 512" % (sSTEP, sSTEP))
e("v_cmp_gt_u32 %s, %d, v%d" % ("vcc", E, vE))
e("s_mov_b64 %s, vcc" % sr(sPEND))
e("s_waitcnt vmcnt(0)")
make_rec(T + 10, T + 11, vR, T, T + 1)
e("v_and_b32 v%d, 255, v%d" % (T + 10, T + 10))
e("v_cmp_eq_u32 vcc, s2, v%d" % (T + 10))
e("s_and_b64 %s, %s, vcc" % (sr(sPEND), sr(sPEND)))
lab("L_scan_retry")
e("s_mov_b64 exec, %s" % sr(sPEND))
e("s_cbranch_execz L_scan_b")
e("v_mov_b32 v%d, v%d" % (RE, vE))
rec_a(vR, RN, RE, EV)
e("s_waitcnt lgkmcnt(0)")
e("v_cmp_gt_u32 vcc, %d, v%d" % (CAP, RN))
e("s_andn2_b64 %s, %s, vcc" % (sr(sPEND), sr(sPEND)))
e("s_and_b64 exec, exec, vcc")
rec_b(vR, RN, T, T + 1)
e("s_waitcnt vmcnt(0)")
e("ds_write_b64 v%d, %s offset:%d" % (RN, vr(EV, 2), 3 * CS))
lab("L_scan_b")
e("s_mov_b64 exec, -1")
e("s_waitcnt lgkmcnt(0)")
e("s_barrier")
e("v_mov_b32 v%d, %d" % (T, L_CNT2))
e("ds_read_b64 %s, v%d" % (vr(T + 4, 2), T))
e("s_waitcnt lgkmcnt(0)")
e("v_max_u32 v%d, v%d, v%d" % (T + 7, T + 4, T + 5))
nop(1)
e("v_readfirstlane_b32 s%d, v%d" % (sTMP, T + 7))
e("s_mov_b32 s%d, 3" % sMODE)
e("s_cmp_gt_u32 s%d, %d" % (sTMP, CAP))
e("s_cbranch_scc1 L_flush")
e("s_mov_b32 s%d, 4" % sMODE)
e("s_cmp_ge_u32 s%d, %d" % (sSTEP, E))
e("s_cbranch_scc1 L_flush")
e("s_barrier")
e("s_branch L_scan_step")
lab("L_slow_ret")
e("s_waitcnt vmcnt(0)")
e("s_cmp_eq_u32 s%d, 4" % sMODE)
e("s_cbranch_scc1 L_epi")
e("s_branch L_scan_reset")
lab("L_codeend")

out.append('.section .rodata,"a"'); out.append(".p2align 6")
out.append(".amdhsa_kernel " + KN)
for l in ["next_free_vgpr 256", "next_free_sgpr 102", "accum_offset 256", "group_segment_fixed_size 0", "kernarg_size 72",
          "user_sgpr_count 2", "user_sgpr_kernarg_segment_ptr 1", "system_sgpr_workgroup_id_x 1"]:
    out.append("  .amdhsa_" + l)
out.append(".end_amdhsa_kernel")
if OPT["stamps"]: print(" ".join("t%d=%s" % (i, n) for i, n in enumerate(snames)))
open(sys.argv[1], "w").write("\n".join(out) + "\n")
```

```python
import sys
KN = "gather_scatter__mpnn_edge_mlp__graph_kernel"
OPT = dict(stamps=0, force_mode=0, spin=2000, gsc1=0, pf=1, epf=1, wu1=0, t01=2, wpf=1, dbg=0)
for a in sys.argv[2:]:
    k, v = a.split("="); OPT[k] = int(v)

N, E = 10000, 160000
CH = 625
CAP = 448
CS = CAP * 16 + 64
R = 4
L_OH, L_LIST, LSTR = 0, 8 * CS, 2560
L_CNT = L_LIST + 2 * LSTR
L_CNT2 = L_CNT + 1024
L_MODE = L_CNT2 + 8
L_EPOCH = L_CNT2 + 12
L_X = 32768
L_RING = 65536
L_A, L_B, L_C = L_RING, L_RING + 32768, 131072
SLOT = 16384
LDS = 163840
W_FLAG, W_P, W_SLOT, W_STAMP = 0x10000, 0x80000, 0x400000, 0x1000000
SENT = 0x3FFFFFFF
NLOG2E = 0xBFB8AA3B
NLN2 = 0xBF317218

out = []
def e(s): out.append("    " + s)
def lab(s): out.append(s + ":")
def nop(n): e("s_nop %d" % (n - 1))

class Al:
    def __init__(s, start): s.n = start
    def __call__(s, cnt=1, al=1):
        s.n = (s.n + al - 1) // al * al
        r = s.n; s.n += cnt; return r
va = Al(1)
def vr(b, n): return "v[%d:%d]" % (b, b + n - 1)
def sr(b, n=2): return "s[%d:%d]" % (b, b + n - 1)

sX, sEA, sSRC, sDST, sWM, sWU, sOUT, sDBG, sWS = 4, 6, 8, 10, 12, 14, 16, 18, 20
sXD, sPD, sED, sDD, sSD = 24, 28, 32, 36, 40
sW, sSB, sCB, sT, sE1, sNT, sIT, sMODE, sLVL, sSTEP, sRB, sCP, sTMP, sTMP2, sSPIN = range(44, 59)
sM = 60
sNA, sVA, sVB, sNB, sPA, sPB, sODD, sQ, sQ2, sPEND, sNV = 72, 74, 76, 78, 80, 82, 84, 86, 88, 90, 92
sC1, sC2 = 94, 96
sST = 98
vL = va(); vDO = va(); vAS0 = va(); vAS1 = va(); vWN = va(); vWP = va()
vP0 = va(); vP1 = va(); vOH = va(); vS = va(); vLI = va(); vTW = va(); vSW = va(); vCB = va(); vONE = va(); vFA = va(); vBF1 = va(); vEB = va(); vSL = va()
vI0 = va(2, 2); vI1 = va(2, 2)
T = va(24, 4)
Y0 = va(16, 4); Y1 = va(16, 4); EE = va(16, 4); MSG = va(8, 4); AGG = va(16, 4); U = va(16, 4)
QW = va(8, 4); ID = va(8, 4); PA = va(8, 4); OA = va(8, 4); SA = va(8, 4)
W1F = va(32, 4); XF = va(32, 4)
WT = Y0
stampn = [0]
vST = va(16, 4)
assert va.n <= 256, va.n

snames = ["start"]
def stamp(name="?", sets=(1,)):
    if OPT["stamps"] not in sets: return
    snames.append(name)
    i = stampn[0]; stampn[0] += 1
    e("s_memrealtime %s" % sr(sST)); e("s_waitcnt lgkmcnt(0)"); e("v_mov_b32 v%d, s%d" % (vST + i, sST))

def mfma(d, a, b, c):
    e("v_mfma_f32_32x32x16_bf16 %s, %s, %s, %s" % (vr(d, 16), vr(a, 4), vr(b, 4), c if isinstance(c, str) else vr(c, 16)))

def setm0(val_s=None, imm=0):
    if val_s is None: e("s_mov_b32 m0, 0x%x" % imm)
    elif imm == 0: e("s_mov_b32 m0, s%d" % val_s)
    else: e("s_add_u32 m0, s%d, 0x%x" % (val_s, imm))

def w_dma(sbase, rowoff, ldsbase):
    for i in range(4):
        e("s_add_u32 m0, s%d, 0x%x" % (sTMP2, ldsbase + i * 1024))
        e("v_add_u32 v%d, 0x%x, v%d" % (T + 20, rowoff * 256 + i * 4096, vSW))
        e("global_load_lds_dwordx4 v%d, %s" % (T + 20, sr(sbase)))

def w_frag(dst, vaddr, ldsbase):
    e("v_add_u32 v%d, 0x%x, v%d" % (T + 20, ldsbase, vaddr))
    for j in range(8):
        for u in range(2):
            e("ds_read_b64_tr_b16 %s, v%d offset:%d" % (vr(dst + 4 * j + 2 * u, 2), T + 20, j * 1024 + u * 256))

def tile_frag(dst, sbase_imm, segstride):
    e("s_mul_i32 s%d, s%d, %d" % (sTMP, sSB, 4 * segstride))
    e("s_add_u32 s%d, s%d, 0x%x" % (sTMP, sTMP, sbase_imm))
    e("v_add_u32 v%d, s%d, v%d" % (T + 21, sTMP, vAS0))
    e("v_add_u32 v%d, s%d, v%d" % (T + 22, sTMP, vAS1))
    for j in range(8):
        e("ds_read_b128 %s, v%d offset:%d" % (vr(dst + 4 * j, 4), T + 21 + (j & 1), (j >> 1) * segstride))

def node_idx(schunk):
    e("v_lshrrev_b32 v%d, 2, v%d" % (T, vL))
    e("s_lshl_b32 s%d, s%d, 8" % (sTMP, sSB))
    e("s_add_u32 s%d, s%d, s%d" % (sTMP, sTMP, schunk))
    e("v_lshl_add_u32 v%d, v%d, 9, s%d" % (vI0, T, sTMP))
    e("v_add_u32 v%d, 0x2000, v%d" % (vI1, vI0))

def x_dma():
    e("s_lshl_b32 s%d, s%d, 11" % (sTMP, sW))
    e("s_add_u32 m0, s%d, 0x%x" % (sTMP, L_X))
    nop(1)
    e("buffer_load_dwordx4 %s, %s, 0 idxen offen lds" % (vr(vI0, 2), sr(sXD, 4)))
    e("s_add_u32 m0, s%d, 0x%x" % (sTMP, L_X + 1024))
    nop(1)
    e("buffer_load_dwordx4 %s, %s, 0 idxen offen lds" % (vr(vI1, 2), sr(sXD, 4)))

def srd(d, base, stride, nrec, add=0):
    if add:
        e("s_add_u32 s%d, s%d, 0x%x" % (d, base, add))
        e("s_addc_u32 s%d, s%d, 0" % (d + 1, base + 1))
        if stride: e("s_or_b32 s%d, s%d, 0x%x" % (d + 1, d + 1, stride << 16))
    else:
        e("s_mov_b32 s%d, s%d" % (d, base))
        if stride: e("s_or_b32 s%d, s%d, 0x%x" % (d + 1, base + 1, stride << 16))
        else: e("s_mov_b32 s%d, s%d" % (d + 1, base + 1))
    e("s_mov_b32 s%d, %d" % (d + 2, nrec))
    e("s_mov_b32 s%d, 0x20000" % (d + 3))

def tr_addr(sbase, imm):
    e("s_add_u32 s%d, s%d, 0x%x" % (sTMP, sbase, imm))
    e("v_add_u32 v%d, s%d, v%d" % (T + 8, sTMP, vTW))
    e("v_xor_b32 v%d, 16, v%d" % (T + 9, T + 8))
    e("v_lshl_add_u32 v%d, v%d, 4, s%d" % (T + 10, vL, sTMP))

def tr_store(src, srdreg, flags):
    e("ds_write_b128 v%d, %s" % (T + 8, vr(src, 4)))
    e("ds_write_b128 v%d, %s" % (T + 9, vr(src + 4, 4)))
    e("ds_read_b128 %s, v%d" % (vr(src, 4), T + 10))
    e("ds_read_b128 %s, v%d offset:1024" % (vr(src + 4, 4), T + 10))
    e("s_waitcnt lgkmcnt(1)")
    e("buffer_store_dwordx4 %s, %s, %s, 0 idxen offen%s" % (vr(src, 4), vr(vI0, 2), sr(srdreg, 4), flags))
    e("s_waitcnt lgkmcnt(0)")
    e("buffer_store_dwordx4 %s, %s, %s, 0 idxen offen%s" % (vr(src + 4, 4), vr(vI1, 2), sr(srdreg, 4), flags))

def p_compute(wf=None, fused=False):
    wf = W1F if wf is None else wf
    if fused:
        e("s_lshl_b32 s%d, s%d, 13" % (sTMP, sSB))
        e("s_add_u32 s%d, s%d, 0x%x" % (sTMP, sTMP, L_X))
        e("v_add_u32 v%d, s%d, v%d" % (T + 21, sTMP, vAS0))
        e("v_add_u32 v%d, s%d, v%d" % (T + 22, sTMP, vAS1))
        e("v_add_u32 v%d, 0x%x, v%d" % (T + 20, L_B, vWP))
        def rd(j):
            e("ds_read_b128 %s, v%d offset:%d" % (vr(XF + 4 * j, 4), T + 21 + (j & 1), (j >> 1) * 2048))
            for u in range(2):
                e("ds_read_b64_tr_b16 %s, v%d offset:%d" % (vr(wf + 4 * j + 2 * u, 2), T + 20, j * 1024 + u * 256))
        for j in range(5): rd(j)
        for j in range(8):
            e("s_waitcnt lgkmcnt(%d)" % (3 * min(4, 7 - j)))
            mfma(EE, wf + 4 * j, XF + 4 * j, "0" if j == 0 else EE)
            if j + 5 < 8: rd(j + 5)
        e("s_barrier")
        stamp("barC0", (2,))
    else:
        for j in range(8):
            mfma(EE, wf + 4 * j, XF + 4 * j, "0" if j == 0 else EE)
    tr_addr(sTMP2, L_B)
    nop(8)
    for j in range(8):
        e("v_pk_mul_f32 %s, %s, %s" % (vr(EE + 2 * j, 2), vr(EE + 2 * j, 2), sr(sC1)))
    for j in range(8):
        e("v_cvt_pk_bf16_f32 v%d, v%d, v%d" % (MSG + j, EE + 2 * j, EE + 2 * j + 1))
    if fused and OPT["stamps"] == 4:
        stamp("cvt", (4,)); e("s_waitcnt vmcnt(0)"); stamp("puback", (4,))
    tr_store(MSG, sPD, " sc1")
    if fused and OPT["stamps"] == 4:
        stamp("pst", (4,)); e("s_waitcnt vmcnt(0)"); stamp("pack0", (4,))

def qu_compute():
    w_frag(WT, vWN, L_B)
    e("v_add_u32 v%d, 0x%x, v%d" % (T + 21, L_C, vWP))
    for j in range(4): e("v_mov_b32 v%d, 0" % (MSG + j))
    e("v_and_b32 v%d, 31, v%d" % (T + 22, vL))
    e("s_lshl_b32 s%d, s%d, 6" % (sTMP, sCB))
    e("v_lshl_add_u32 v%d, v%d, 1, s%d" % (T + 22, T + 22, sTMP))
    def rl(j):
        for u in range(2):
            e("ds_read_b64_tr_b16 %s, v%d offset:%d" % (vr(WT + 4 * j + 2 * u, 2), T + 21, j * 1024 + u * 256))
    for j in range(8):
        e("s_waitcnt lgkmcnt(%d)" % (14 if j == 0 else 12))
        mfma(AGG, XF + 4 * j, WT + 4 * j, "0" if j == 0 else AGG)
        if j: rl(j - 1)
    for j in range(8):
        e("s_waitcnt lgkmcnt(%d)" % (12 if j == 0 else (4 if j == 7 else 2 * (6 - j) + 2 + min(j - 1, 4))))
        mfma(U, WT + 4 * j, XF + 4 * j, "0" if j == 0 else U)
        if j == 0: rl(7)
        elif j <= 4: e("ds_read_u16_d16_hi v%d, v%d offset:%d" % (MSG + j - 1, T + 22, L_CNT + 256 * (j - 1)))
    e("s_waitcnt lgkmcnt(0)")
    e("s_mov_b32 exec_lo, 0")
    for j in range(4): e("v_mov_b32 v%d, v%d" % (AGG + 8 + j, MSG + j))
    e("s_mov_b32 exec_lo, -1")
    for j in range(8): e("v_pk_mul_f32 %s, %s, %s" % (vr(AGG + 2 * j, 2), vr(AGG + 2 * j, 2), sr(sC1)))
    for j in range(8): e("v_cvt_pk_bf16_f32 v%d, v%d, v%d" % (QW + j, AGG + 2 * j, AGG + 2 * j + 1))
    for j in range(16): e("v_mov_b32 v%d, 0" % (AGG + j))

def reset_lists(tag):
    for j in range(4): e("v_mov_b32 v%d, 0" % (T + j))
    e("v_lshlrev_b32 v%d, 4, v0" % (T + 8))
    for j in range(7): e("ds_write_b128 v%d, %s offset:%d" % (T + 8, vr(T, 4), j * 8192))
    e("v_cmp_lt_u32 vcc, 31, v0")
    nop(2)
    e("v_cndmask_b32_e64 v%d, 0, -1, vcc" % (T + 4))
    for j in range(1, 4): e("v_mov_b32 v%d, v%d" % (T + 4 + j, T + 4))
    e("v_cmp_gt_u32 vcc, 352, v0")
    e("s_and_b64 exec, vcc, -1")
    e("s_cbranch_execz L_rl_%s" % tag)
    e("ds_write_b128 v%d, %s offset:%d" % (T + 8, vr(T + 4, 4), 7 * 8192))
    lab("L_rl_%s" % tag)
    e("s_mov_b64 exec, -1")
    e("v_mov_b32 v%d, %d" % (T + 8, L_CNT2))
    e("ds_write_b64 v%d, %s" % (T + 8, vr(T, 2)))

def rec_a(x, n, eid, ev):
    e("v_bfe_u32 v%d, v%d, 19, 1" % (n, x))
    e("v_lshlrev_b32 v%d, 2, v%d" % (n, n))
    e("ds_add_rtn_u32 v%d, v%d, v%d offset:%d" % (n, n, vONE, L_CNT2))
    if ev is None: return
    e("v_lshlrev_b32 v%d, 3, v%d" % (eid, eid))
    e("buffer_load_dwordx2 %s, v%d, %s, 0 offen" % (vr(ev, 2), eid, sr(sED, 4)))

def rec_b(x, n, t0, t1):
    e("v_bfe_u32 v%d, v%d, 19, 1" % (t0, x))
    e("v_mul_u32_u24 v%d, %d, v%d" % (t1, LSTR // 4, t0))
    e("v_add_lshl_u32 v%d, v%d, v%d, 2" % (t1, t1, n))
    e("v_lshlrev_b32 v%d, 4, v%d" % (n, n))
    e("v_and_b32 v%d, 0x3fff, v%d" % (vFA, x))
    e("ds_write_b32 v%d, v%d offset:%d" % (t1, vFA, L_LIST))
    e("v_bfe_u32 v%d, v%d, 17, 3" % (t1, x))
    e("v_mad_u32_u24 v%d, v%d, v%d, v%d" % (t1, t1, vCB, n))
    e("v_bfe_u32 v%d, v%d, 14, 3" % (vFA, x))
    e("v_lshl_add_u32 v%d, v%d, 1, v%d" % (t1, vFA, t1))
    e("ds_write_b16 v%d, v%d" % (t1, vBF1))
    e("v_lshlrev_b32 v%d, 2, v%d" % (t0, t0))
    e("v_mad_u32_u24 v%d, v%d, v%d, v%d" % (n, t0, vCB, n))

def make_rec(dst, src, rec, t0, t1):
    e("v_bfe_u32 v%d, v%d, 9, 5" % (t0, dst))
    e("v_and_b32 v%d, 0x13, v%d" % (rec, t0))
    e("v_and_b32 v%d, 4, v%d" % (t1, t0))
    e("v_lshl_or_b32 v%d, v%d, 1, v%d" % (rec, t1, rec))
    e("v_bfe_u32 v%d, v%d, 3, 1" % (t1, t0))
    e("v_lshl_or_b32 v%d, v%d, 2, v%d" % (rec, t1, rec))
    e("v_bfe_u32 v%d, v%d, 8, 1" % (t1, dst))
    e("v_lshl_or_b32 v%d, v%d, 5, v%d" % (rec, t1, rec))
    e("v_and_b32 v%d, 0x3fff, v%d" % (t1, src))
    e("v_lshl_or_b32 v%d, v%d, 14, v%d" % (rec, rec, t1))

out.append("; @launch grid=(256,1,1) block=(512,1,1) lds=%d" % LDS)
out.append('.amdgcn_target "amdgcn-amd-amdhsa--gfx950"')
out.append(".text"); out.append(".globl " + KN); out.append(".p2align 8"); out.append(".type %s,@function" % KN)
lab(KN)
e("s_cmp_ge_u32 s2, 256")
e("s_cbranch_scc1 L_end")
e("s_load_dwordx16 s[4:19], s[0:1], 0")
e("s_load_dwordx2 s[20:21], s[0:1], 64")
if OPT["stamps"]:
    e("s_memrealtime %s" % sr(sST))
e("v_lshrrev_b32 v%d, 6, v0" % T)
e("v_and_b32 v%d, 63, v0" % vL)
e("v_readfirstlane_b32 s%d, v%d" % (sW, T))
if OPT["pf"]:
    e("s_sub_u32 s%d, s%d, 3" % (sTMP, sW))
    e("s_cmp_gt_u32 s%d, 1" % sTMP)
    e("s_cbranch_scc1 L_nopf")
    e("s_getpc_b64 %s" % sr(sQ))
    lab("L_pc")
    e("v_and_b32 v%d, 127, v0" % (T + 18))
    e("v_lshlrev_b32 v%d, 7, v%d" % (T + 18, T + 18))
    e("v_min_u32 v%d, L_codeend-L_pc-4, v%d" % (T + 18, T + 18))
    e("global_load_dword v%d, v%d, %s" % (T + 18, T + 18, sr(sQ)))
    lab("L_nopf")
e("s_mul_i32 s%d, s2, %d" % (sTMP, CH * 4))
e("v_lshl_add_u32 v%d, v0, 2, s%d" % (T + 16, sTMP))
e("s_lshr_b32 s%d, s%d, 2" % (sSB, sW))
e("s_and_b32 s%d, s%d, 3" % (sCB, sW))
for j in range(4): e("v_mov_b32 v%d, 0x%x" % (T + 4 + j, SENT))
e("v_lshlrev_b32 v%d, 4, v0" % (T + 8))
e("v_mov_b32 v%d, 0" % (T + 17))
e("v_lshlrev_b32 v%d, 2, v0" % (T + 9))
e("v_lshrrev_b32 v%d, 4, v%d" % (T, vL))
e("v_xor_b32 v%d, v%d, v%d" % (T + 1, T, vL))
e("v_and_b32 v%d, 3, v%d" % (T + 1, T + 1))
e("s_lshl_b32 s%d, s%d, 6" % (sTMP, sCB))
e("v_lshl_add_u32 v%d, v%d, 4, s%d" % (vI0 + 1, T + 1, sTMP))
e("v_mov_b32 v%d, v%d" % (vI1 + 1, vI0 + 1))
e("v_lshrrev_b32 v%d, 2, v%d" % (T + 1, vL))
e("v_and_b32 v%d, 3, v%d" % (T + 2, vL))
e("v_lshlrev_b32 v%d, 8, v%d" % (T + 1, T + 1))
e("v_lshl_add_u32 v%d, v%d, 4, v%d" % (T + 1, T + 2, T + 1))
e("s_lshl_b32 s%d, s%d, 14" % (sTMP2, sSB))
e("s_add_u32 s%d, s%d, s%d" % (sTMP, sTMP, sTMP2))
e("v_add_u32 v%d, s%d, v%d" % (vSW, sTMP, T + 1))
e("s_lshl_b32 s%d, s%d, 13" % (sTMP2, sCB))
e("s_lshl_b32 s%d, s%d, 12" % (sTMP, sSB))
e("s_add_u32 s%d, s%d, s%d" % (sTMP2, sTMP2, sTMP))
e("v_cmp_gt_u32 %s, %d, v0" % ("vcc", CH - 512))
e("s_mov_b64 %s, vcc" % sr(sQ2))
node_idx(2)
e("s_waitcnt lgkmcnt(0)")
if OPT["stamps"]:
    e("v_mov_b32 v%d, s%d" % (vST, sST)); stampn[0] = 1
stamp("karg", (1,2,3))
e("global_load_dword v%d, v%d, %s" % (T + 10, T + 16, sr(sDST)))
e("global_load_dword v%d, v%d, %s" % (T + 11, T + 16, sr(sSRC)))
srd(sXD, sX, 256, N)
e("s_cmp_ge_u32 s%d, 2" % sW)
e("s_cbranch_scc1 L_no2")
e("s_mov_b64 exec, %s" % sr(sQ2))
e("global_load_dword v%d, v%d, %s offset:2048" % (T + 12, T + 16, sr(sDST)))
e("global_load_dword v%d, v%d, %s offset:2048" % (T + 13, T + 16, sr(sSRC)))
e("s_mov_b64 exec, -1")
e("s_branch L_nowpf")
lab("L_no2")
e("s_lshr_b32 s%d, s2, 3" % sTMP)
e("s_cmp_lg_u32 s%d, 2" % sW)
e("s_cbranch_scc1 L_noe")
e("global_load_dword v%d, v%d, %s sc1" % (T + 15, T + 17, sr(sWS)))
lab("L_noe")
e("s_cmp_lg_u32 s%d, 7" % sW)
e("s_cbranch_scc1 L_nw7")
e("s_lshl_b32 s%d, s%d, 11" % (sQ, sTMP))
e("v_lshl_add_u32 v%d, v%d, 5, s%d" % (T + 21, vL, sQ))
e("global_load_dword v%d, v%d, %s" % (T + 21, T + 21, sr(sWU)))
lab("L_nw7")
e("s_cmp_lg_u32 s%d, 6" % sW)
e("s_cbranch_scc1 L_nw6")
e("s_mul_i32 s%d, s%d, 2080" % (sQ, sTMP))
e("v_lshl_add_u32 v%d, v%d, 5, s%d" % (T + 21, vL, sQ))
e("global_load_dword v%d, v%d, %s offset:60" % (T + 21, T + 21, sr(sWM)))
lab("L_nw6")
e("s_cmp_lg_u32 s%d, 5" % sW)
e("s_cbranch_scc1 L_nowpf")
e("s_mul_i32 s%d, s2, %d" % (sQ, CH * 8))
e("v_mul_u32_u24 v%d, 76, v%d" % (T + 21, vL))
e("v_add_u32 v%d, s%d, v%d" % (T + 21, sQ, T + 21))
e("global_load_dword v%d, v%d, %s offset:104" % (T + 21, T + 21, sr(sEA)))
lab("L_nowpf")
x_dma()
e("ds_write_b32 v%d, v%d offset:%d" % (T + 9, T + 17, L_CNT))
for j in range(4): e("ds_write_b128 v%d, %s offset:%d" % (T + 8, vr(T + 4, 4), j * 8192))
e("v_mov_b32 v%d, 1" % vONE)
e("v_lshrrev_b32 v%d, 1, v0" % (T + 4))
e("v_and_b32 v%d, 1, v0" % (T + 5))
e("v_lshlrev_b32 v%d, 4, v%d" % (T + 5, T + 5))
e("v_lshl_add_u32 v%d, v%d, 7, v%d" % (T + 19, T + 4, T + 5))
e("v_lshlrev_b32 v%d, 2, v%d" % (T + 22, T + 4))
e("s_lshl_b32 s%d, s2, 5" % sTMP)
e("s_add_u32 s%d, s%d, 0x%x" % (sTMP, sTMP, W_SLOT))
e("v_lshl_add_u32 v%d, v%d, 13, v%d" % (T + 23, T + 4, T + 5))
e("v_add_u32 v%d, s%d, v%d" % (T + 23, sTMP, T + 23))
e("v_mov_b32 v%d, %d" % (T + 14, L_EPOCH))
stamp("pre", (3,))
w_dma(sWM, 0, L_B)
stamp("w1iss", (3,))
e("s_waitcnt lgkmcnt(0)")
e("s_barrier")
stamp("bar0", (1,2,3))
e("s_waitcnt vmcnt(6)")
stamp("dst", (1,3))
e("v_and_b32 v%d, 255, v%d" % (T + 8, T + 10))
e("v_lshlrev_b32 v%d, 2, v%d" % (T + 2, T + 8))
e("ds_add_rtn_u32 v%d, v%d, v%d offset:%d" % (T + 6, T + 2, vONE, L_CNT))
e("s_cmp_ge_u32 s%d, 2" % sW)
e("s_cbranch_scc1 L_rank1")
e("s_mov_b64 exec, %s" % sr(sQ2))
e("v_and_b32 v%d, 255, v%d" % (T + 9, T + 12))
e("v_lshlrev_b32 v%d, 2, v%d" % (T + 2, T + 9))
e("ds_add_rtn_u32 v%d, v%d, v%d offset:%d" % (T + 7, T + 2, vONE, L_CNT))
make_rec(T + 12, T + 13, T + 5, T, T + 1)
e("v_add_u32 v%d, 512, v0" % T)
e("v_lshl_or_b32 v%d, v%d, 20, v%d" % (T + 5, T, T + 5))
e("s_mov_b64 exec, -1")
make_rec(T + 10, T + 11, T + 4, T, T + 1)
e("v_lshl_or_b32 v%d, v0, 20, v%d" % (T + 4, T + 4))
e("s_mov_b64 exec, %s" % sr(sQ2))
e("s_waitcnt lgkmcnt(0)")
def put_rec(b, r, rec):
    e("v_cmp_gt_u32 vcc, 24, v%d" % r)
    e("v_mul_u32_u24 v%d, 11, v%d" % (T, r))
    e("v_lshrrev_b32 v%d, 5, v%d" % (T, T))
    e("v_add_lshl_u32 v%d, v%d, v%d, 2" % (T, T, r))
    e("v_lshl_add_u32 v%d, v%d, 7, v%d" % (T, b, T))
    e("s_and_b64 exec, exec, vcc")
    e("ds_write_b32 v%d, v%d" % (T, rec))
    e("s_mov_b64 exec, -1")
put_rec(T + 9, T + 7, T + 5)
e("s_branch L_rank2")
lab("L_rank1")
make_rec(T + 10, T + 11, T + 4, T, T + 1)
e("v_lshl_or_b32 v%d, v0, 20, v%d" % (T + 4, T + 4))
e("s_cmp_lg_u32 s%d, 2" % sW)
e("s_cbranch_scc1 L_rank1b")
e("ds_write_b32 v%d, v%d" % (T + 14, T + 15))
lab("L_rank1b")
e("s_waitcnt lgkmcnt(0)")
lab("L_rank2")
put_rec(T + 8, T + 6, T + 4)
e("s_waitcnt lgkmcnt(0)")
stamp("rank", (3,))
e("s_barrier")
stamp("barA", (3,))
e("ds_read_b32 v%d, v%d" % (T + 9, T + 14))
e("ds_read_b128 %s, v%d" % (vr(T, 4), T + 19))
e("ds_read_b32 v%d, v%d offset:%d" % (T + 13, T + 22, L_CNT))
e("ds_read_b128 %s, v%d offset:32" % (vr(T + 4, 4), T + 19))
e("v_add_u32 v%d, 0x200000, v%d" % (T + 15, T + 23))
e("s_waitcnt lgkmcnt(3)")
e("v_readfirstlane_b32 s%d, v%d" % (sE1, T + 9))
e("s_add_u32 s%d, s%d, 1" % (sE1, sE1))
e("s_mul_i32 s%d, s%d, 0x9e3779b1" % (sT, sE1))
e("s_waitcnt lgkmcnt(2)")
e("v_mov_b32 v%d, s%d" % (T + 3, sT))
e("global_store_dwordx4 v%d, %s, %s sc1" % (T + 23, vr(T, 4), sr(sWS)))
e("s_waitcnt lgkmcnt(0)")
e("v_cmp_le_u32 vcc, 6, v%d" % (T + 13))
e("v_mov_b32 v%d, s%d" % (T + 7, sT))
e("s_mov_b32 s%d, 0" % sLVL)
e("s_and_b64 exec, vcc, -1")
e("s_cbranch_execz L_pub1")
e("global_store_dwordx4 v%d, %s, %s sc1" % (T + 15, vr(T + 4, 4), sr(sWS)))
e("v_cmp_le_u32 vcc, 12, v%d" % (T + 13))
e("s_and_b64 exec, exec, vcc")
e("s_cbranch_execnz L_pub_more")
e("s_mov_b32 s%d, 1" % sLVL)
lab("L_pub1")
e("s_mov_b64 exec, -1")
stamp("pub", (1,2,3,4))
e("v_and_b32 v%d, 31, v%d" % (T, vL))
e("v_lshrrev_b32 v%d, 5, v%d" % (T + 1, vL))
e("v_bfe_u32 v%d, v%d, 2, 2" % (T + 2, vL))
e("v_xor_b32 v%d, v%d, v%d" % (T + 3, T + 1, T + 2))
e("v_lshlrev_b32 v%d, 4, v%d" % (T + 3, T + 3))
e("v_lshl_add_u32 v%d, v%d, 6, v%d" % (vAS0, T, T + 3))
e("v_xor_b32 v%d, 32, v%d" % (vAS1, vAS0))
e("v_lshlrev_b32 v%d, 1, v%d" % (T + 3, T + 1))
e("v_xor_b32 v%d, v%d, v%d" % (T + 3, T + 3, T + 2))
e("v_lshlrev_b32 v%d, 4, v%d" % (T + 3, T + 3))
e("v_lshl_add_u32 v%d, v%d, 6, v%d" % (vTW, T, T + 3))
e("v_lshl_add_u32 v%d, v%d, 3, v%d" % (T + 3, T + 1, T + 2))
e("s_lshl_b32 s%d, s%d, 13" % (sTMP, sCB))
e("v_lshl_add_u32 v%d, v%d, 6, s%d" % (T + 3, T + 3, sTMP))
e("v_bfe_u32 v%d, v%d, 4, 1" % (T + 4, vL))
e("v_and_b32 v%d, 3, v%d" % (T + 5, vL))
e("v_lshl_add_u32 v%d, v%d, 2, v%d" % (T + 6, T + 4, T + 5))
e("v_lshl_add_u32 v%d, v%d, 3, v%d" % (vWN, T + 6, T + 3))
e("v_and_b32 v%d, 1, v%d" % (T + 6, vL))
e("v_bfe_u32 v%d, v%d, 1, 1" % (T + 7, vL))
e("v_lshl_add_u32 v%d, v%d, 1, v%d" % (T + 9, T + 4, T + 7))
e("v_lshl_add_u32 v%d, v%d, 2, v%d" % (T + 14, T + 6, T + 9))
e("v_lshl_add_u32 v%d, v%d, 3, v%d" % (vWP, T + 14, T + 3))
e("v_mov_b32 v%d, %d" % (vCB, CS))
e("s_mul_i32 s%d, s%d, %d" % (sTMP, sSB, 4 * CS))
e("v_lshl_add_u32 v%d, v%d, 4, s%d" % (T + 3, T, sTMP))
e("v_mad_u32_u24 v%d, v%d, v%d, v%d" % (vEB, T + 1, vCB, T + 3))
e("v_lshl_add_u32 v%d, v%d, 2, v%d" % (T + 3, T + 1, T + 2))
e("v_lshl_add_u32 v%d, v%d, 4, s%d" % (T + 3, T + 3, sTMP))
e("v_lshl_add_u32 v%d, v%d, 3, v%d" % (T + 3, T + 6, T + 3))
e("v_mad_u32_u24 v%d, v%d, v%d, v%d" % (vSL, T + 9, vCB, T + 3))
srd(sPD, sWS, 256, N, W_P)
e("s_mov_b32 s%d, 0x%x" % (sC1, NLOG2E)); e("s_mov_b32 s%d, 0x%x" % (sC1 + 1, NLOG2E))
e("s_cmp_eq_u32 s%d, 2" % sLVL)
e("s_cbranch_scc1 L_pw4")
e("s_cmp_eq_u32 s%d, 1" % sLVL)
e("s_cbranch_scc1 L_pw2")
if OPT["stamps"] == 3: e("s_waitcnt vmcnt(5)")
else: e("s_waitcnt vmcnt(1)")
lab("L_pw2")
if OPT["stamps"] == 3:
    e("s_waitcnt vmcnt(6)")
    stamp("xland", (3,))
    e("s_cbranch_scc1 L_pw3")
    e("s_waitcnt vmcnt(1)")
    lab("L_pw3")
e("s_waitcnt vmcnt(2)")
lab("L_pw4")
e("s_waitcnt vmcnt(4)")
stamp("w1land", (3,))
e("s_barrier")
stamp("barB", (1,2,3))
p_compute(None, True)
stamp("pst", (2,))
w_dma(sWU, 128, L_A)
stamp("wu2iss", (2,4))
if OPT["stamps"] == 4: e("s_waitcnt vmcnt(0)"); stamp("wu2land", (4,))
reset_lists("a")
stamp("reset", (2,4))
w_dma(sWM, 128, L_B)
w_dma(sWU, 0, L_C)
stamp("wiss", (2,4))
srd(sED, sEA, 0, E * 8)
e("v_mov_b32 v%d, 0x3f80" % vBF1)
e("s_mov_b32 s%d, 0x%x" % (sC2, NLN2)); e("s_mov_b32 s%d, 0x%x" % (sC2 + 1, NLN2))
e("s_mov_b32 s%d, 0xaaaaaaaa" % sODD); e("s_mov_b32 s%d, 0xaaaaaaaa" % (sODD + 1))
e("s_lshl_b32 s%d, s%d, 11" % (sRB, sW))
e("s_add_u32 s%d, s%d, 0x%x" % (sRB, sRB, L_RING))
e("v_add_u32 v%d, s%d, v%d" % (vP0, sRB, vAS0))
e("v_add_u32 v%d, s%d, v%d" % (vP1, sRB, vAS1))
for j in range(6): e("v_mov_b32 v%d, 0" % (SA + j)); e("v_mov_b32 v%d, 0" % (OA + j))
RA, RB_, RN, RE, EV = PA, PA + 4, OA, SA, EE
vSWP, vCHB, vFLG = T + 16, T + 17, T + 18
e("s_lshl_b32 s%d, s2, 13" % sTMP)
e("s_add_u32 s%d, s%d, 0x%x" % (sTMP, sTMP, W_SLOT))
e("v_lshl_add_u32 v%d, v0, 4, s%d" % (vSWP, sTMP))
e("v_lshrrev_b32 v%d, 1, v0" % vCHB)
e("s_and_b32 s%d, s2, 7" % sTMP)
e("s_lshl_b32 s%d, s%d, 13" % (sTMP, sTMP))
e("s_add_u32 s%d, s%d, 0x%x" % (sTMP, sTMP, W_FLAG))
e("v_lshl_add_u32 v%d, v%d, 5, s%d" % (vFLG, vCHB, sTMP))
e("v_mul_u32_u24 v%d, %d, v%d" % (vCHB, CH, vCHB))
e("s_mov_b32 s%d, 0" % sLVL)
e("s_mov_b32 s%d, 0" % sSPIN)
e("s_mov_b32 s%d, 0" % sMODE)
e("s_mov_b64 %s, -1" % sr(sNA))
e("v_add_u32 v%d, 0x200000, v%d" % (T + 19, vSWP))
e("s_lshl_b32 s%d, s2, 5" % sTMP)
e("s_add_u32 s%d, s%d, 0x%x" % (sTMP, sTMP, W_FLAG))
e("v_lshl_add_u32 v%d, v%d, 13, s%d" % (T + 2, vL, sTMP))
e("v_mov_b32 v%d, s%d" % (T, sT))
e("v_not_b32 v%d, v%d" % (T + 1, T))
e("v_lshlrev_b32 v%d, 4, v%d" % (T + 3, vL))
e("v_add_u32 v%d, 0x10000, v%d" % (T + 3, T + 3))
e("s_mov_b32 m0, %d" % L_CNT)
e("s_waitcnt vmcnt(8) lgkmcnt(0)")
stamp("pack", (2,))
e("s_barrier")
e("s_cmp_lg_u32 s%d, 0" % sW)
e("s_cbranch_scc1 L_noflag")
e("s_mov_b64 exec, 0xff")
e("global_store_dwordx2 v%d, %s, %s sc1" % (T + 2, vr(T, 2), sr(sWS)))
e("s_mov_b64 exec, -1")
e("global_load_lds_dwordx4 v%d, %s" % (T + 3, sr(sWM)))
lab("L_noflag")
stamp("flag", (1,2,4))
e("global_load_dwordx4 %s, v%d, %s sc1" % (vr(RA, 4), vSWP, sr(sWS)))
e("global_load_dwordx4 %s, v%d, %s sc1" % (vr(RB_, 4), T + 19, sr(sWS)))
w_frag(W1F, vWP, L_A)
e("v_and_b32 v%d, 31, v%d" % (T + 10, vL))
e("v_lshrrev_b32 v%d, 5, v%d" % (T + 11, vL))
e("v_lshlrev_b32 v%d, 3, v%d" % (T + 11, T + 11))
e("v_sub_u32 v%d, v%d, v%d" % (T + 10, T + 10, T + 11))
e("v_and_b32 v%d, 1, v%d" % (T + 11, vL))
e("v_lshlrev_b32 v%d, 4, v%d" % (T + 11, T + 11))
e("v_lshlrev_b32 v%d, v%d, v%d" % (T + 11, T + 11, vBF1))
e("v_ashrrev_i32 v%d, 1, v%d" % (T + 10, T + 10))
for j in range(8):
    e("v_cmp_eq_u32 vcc, %d, v%d" % ((j & 3) + (j >> 2) * 8, T + 10))
    nop(2)
    e("v_cndmask_b32_e64 v%d, 0, v%d, vcc" % (ID + j, T + 11))
if OPT["force_mode"] == 2:
    e("s_branch L_timeout")
e("s_branch L_pollC")
lab("L_level")
e("s_mov_b64 %s, %s" % (sr(sPA), sr(sNA))); e("s_mov_b64 %s, %s" % (sr(sPB), sr(sNA)))
e("v_add_u32 v%d, 0x200000, v%d" % (T + 19, vSWP))
lab("L_poll")
e("s_mov_b64 exec, %s" % sr(sPA))
e("s_cbranch_execz L_pollB")
e("global_load_dwordx4 %s, v%d, %s sc1" % (vr(RA, 4), vSWP, sr(sWS)))
lab("L_pollB")
e("s_mov_b64 exec, %s" % sr(sPB))
e("s_cbranch_execz L_pollC")
e("global_load_dwordx4 %s, v%d, %s sc1" % (vr(RB_, 4), T + 19, sr(sWS)))
lab("L_pollC")
e("s_mov_b64 exec, %s" % sr(sNA))
e("s_add_u32 s%d, s%d, 1" % (sSPIN, sSPIN))
e("s_waitcnt vmcnt(0)")
e("v_or3_b32 v%d, v%d, v%d, v%d" % (T, RA, RA + 1, RA + 2))
e("v_or3_b32 v%d, v%d, v%d, v%d" % (T + 1, RB_, RB_ + 1, RB_ + 2))
e("v_cmp_eq_u32 %s, s%d, v%d" % (sr(sVA), sT, RA + 3))
e("v_cmp_eq_u32 %s, s%d, v%d" % (sr(sVB), sT, RB_ + 3))
e("v_cmp_gt_u32 %s, 2.0, v%d" % (sr(sPA), T))
e("v_cmp_gt_u32 %s, 2.0, v%d" % (sr(sPB), T + 1))
e("v_cmp_ne_u32 vcc, 0x%x, v%d" % (SENT, RA + 2))
e("s_and_b64 %s, %s, %s" % (sr(sVA), sr(sVA), sr(sPA)))
e("s_and_b64 %s, %s, %s" % (sr(sVB), sr(sVB), sr(sPB)))
e("s_and_b64 %s, vcc, %s" % (sr(sNB), sr(sVA)))
e("s_and_b64 %s, %s, %s" % (sr(sNB), sr(sNB), sr(sODD)))
e("s_lshr_b64 %s, %s, 1" % (sr(sQ), sr(sNB)))
e("s_or_b64 %s, %s, %s" % (sr(sNB), sr(sNB), sr(sQ)))
e("s_andn2_b64 %s, %s, %s" % (sr(sPA), sr(sNA), sr(sVA)))
e("s_and_b64 %s, %s, %s" % (sr(sQ), sr(sPA), sr(sODD)))
e("s_or_b64 %s, %s, %s" % (sr(sPB), sr(sNB), sr(sQ)))
e("s_lshr_b64 %s, %s, 1" % (sr(sQ), sr(sQ)))
e("s_or_b64 %s, %s, %s" % (sr(sPB), sr(sPB), sr(sQ)))
e("s_andn2_b64 %s, %s, %s" % (sr(sPB), sr(sPB), sr(sVB)))
e("s_or_b64 %s, %s, %s" % (sr(sQ), sr(sPA), sr(sPB)))
e("s_cbranch_scc0 L_got")
e("s_cmp_lt_u32 s%d, %d" % (sSPIN, OPT["spin"]))
e("s_cbranch_scc1 L_poll")
e("s_branch L_timeout")
lab("L_got")
e("s_mov_b64 exec, -1")
e("global_load_dwordx2 %s, v%d, %s sc1" % (vr(T + 22, 2), vFLG, sr(sWS)))
stamp("got", (1,4))
recs = [RA, RA + 1, RA + 2, RB_, RB_ + 1, RB_ + 2]
for k, x in enumerate(recs):
    e("v_cmp_ne_u32 vcc, 0x%x, v%d" % (SENT, x))
    e("s_and_b64 %s, vcc, %s" % (sr(sM + 2 * k), sr(sNA if k < 3 else sNB)))
for k, x in enumerate(recs):
    e("s_mov_b64 exec, %s" % sr(sM + 2 * k))
    if k in (2, 3): e("s_cbranch_execz L_ra%d" % (2 if k < 3 else 5))
    rec_a(x, RN + k, None, None)
    e("v_lshrrev_b32 v%d, 20, v%d" % (RE + k, x))
    e("v_add_lshl_u32 v%d, v%d, v%d, 3" % (RE + k, RE + k, vCHB))
    if k in (2, 5): lab("L_ra%d" % k)
e("s_waitcnt lgkmcnt(0)")
e("s_and_b64 %s, %s, %s" % (sr(sNA), sr(sM + 10), sr(sODD)))
for k, x in enumerate(recs):
    e("s_mov_b64 exec, %s" % sr(sM + 2 * k))
    e("s_cbranch_execz L_rb%d" % (2 if k < 3 else 5))
    e("v_cmp_gt_u32 vcc, %d, v%d" % (CAP, RN + k))
    e("s_and_b64 exec, exec, vcc")
    e("s_mov_b64 %s, exec" % sr(sM + 2 * k))
    rec_b(x, RN + k, T, T + 1)
    if k in (2, 5): lab("L_rb%d" % k)
e("s_mov_b64 exec, -1")
e("s_cmp_lg_u64 %s, 0" % sr(sNA))
e("s_cbranch_scc1 L_nextlevel")
lab("L_flags")
e("s_waitcnt vmcnt(0)")
e("v_not_b32 v%d, v%d" % (T + 23, T + 23))
e("v_cmp_ne_u32 vcc, s%d, v%d" % (sT, T + 22))
e("v_cmp_ne_u32 %s, s%d, v%d" % (sr(sQ), sT, T + 23))
e("s_or_b64 exec, vcc, %s" % sr(sQ))
e("s_cbranch_execz L_flagsok")
e("global_load_dwordx2 %s, v%d, %s sc1" % (vr(T + 22, 2), vFLG, sr(sWS)))
e("s_add_u32 s%d, s%d, 1" % (sSPIN, sSPIN))
e("s_cmp_lt_u32 s%d, %d" % (sSPIN, OPT["spin"]))
e("s_cbranch_scc1 L_flags")
lab("L_timeout")
e("s_mov_b32 s%d, 2" % sMODE)
lab("L_setmode")
e("s_mov_b64 exec, -1")
e("s_waitcnt vmcnt(0)")
e("v_mov_b32 v%d, %d" % (T, L_MODE))
e("v_mov_b32 v%d, s%d" % (T + 1, sMODE))
e("ds_max_u32 v%d, v%d" % (T, T + 1))
e("s_branch L_barE")
lab("L_flagsok")
e("s_mov_b64 exec, -1")
e("s_cmp_lg_u32 s%d, 0" % sMODE)
e("s_cbranch_scc1 L_setmode")
def e_load(tag):
    for k in range(6):
        e("s_mov_b64 exec, %s" % sr(sM + 2 * k))
        e("s_cbranch_execz L_el%s%d" % (tag, k))
        e("buffer_load_dwordx2 %s, v%d, %s, 0 offen" % (vr(EV + 2 * k, 2), RE + k, sr(sED, 4)))
        lab("L_el%s%d" % (tag, k))
    e("s_mov_b64 exec, -1")
def e_write(tag):
    for k in range(6):
        e("s_mov_b64 exec, %s" % sr(sM + 2 * k))
        e("ds_write_b64 v%d, %s offset:%d" % (RN + k, vr(EV + 2 * k, 2), 3 * CS))
    e("s_mov_b64 exec, -1")
e_load("a")
lab("L_barE")
e("s_waitcnt lgkmcnt(0)")
e("s_barrier")
stamp("barE", (1,4))
e("v_mov_b32 v%d, %d" % (T, L_CNT2))
e("ds_read_b96 %s, v%d" % (vr(T + 4, 3), T))
e("s_waitcnt lgkmcnt(0)")
e("v_max_u32 v%d, v%d, v%d" % (T + 7, T + 4, T + 5))
e("v_readfirstlane_b32 s%d, v%d" % (sMODE, T + 6))
e("v_readfirstlane_b32 s%d, v%d" % (sTMP, T + 7))
if OPT["force_mode"] == 1:
    e("s_mov_b32 s%d, 1" % sMODE)
e("s_cmp_gt_u32 s%d, %d" % (sTMP, CAP))
e("s_cselect_b32 s%d, 1, 0" % sTMP)
e("s_max_u32 s%d, s%d, s%d" % (sMODE, sMODE, sTMP))
e("s_cmp_lg_u32 s%d, 0" % sMODE)
e("s_cbranch_scc1 L_slow")
lab("L_flush")
e("v_readfirstlane_b32 s%d, v%d" % (sNT, T + 4))
e("v_readfirstlane_b32 s%d, v%d" % (sTMP, T + 5))
e("s_cmp_lg_u32 s%d, 0" % sSB)
e("s_cselect_b32 s%d, s%d, s%d" % (sNT, sTMP, sNT))
e("s_min_u32 s%d, s%d, %d" % (sNT, sNT, CAP))
e("s_add_u32 s%d, s%d, 31" % (sNT, sNT))
e("s_lshr_b32 s%d, s%d, 5" % (sNT, sNT))
e("s_mul_i32 s%d, s%d, %d" % (sTMP, sSB, LSTR))
e("s_add_u32 s%d, s%d, %d" % (sTMP, sTMP, L_LIST))
e("v_and_b32 v%d, 60, v%d" % (vLI, vL))
e("v_add_u32 v%d, s%d, v%d" % (vLI, sTMP, vLI))
for t in range(R):
    e("ds_read2_b32 %s, v%d offset0:%d offset1:%d" % (vr(T + 2 * t, 2), vLI, 32 * t, 32 * t + 16))
e("v_mov_b32 v%d, v%d" % (vOH, vEB))
e("v_mov_b32 v%d, v%d" % (vS, vSL))
def dma(slot):
    setm0(sRB, slot * SLOT); nop(1)
    e(("buffer_load_dwordx4 %s, %s, 0 idxen offen " + ("sc1 " if OPT["gsc1"] else "") + "lds") % (vr(vI0, 2), sr(sPD, 4)))
    setm0(sRB, slot * SLOT + 1024); nop(1)
    e(("buffer_load_dwordx4 %s, %s, 0 idxen offen " + ("sc1 " if OPT["gsc1"] else "") + "lds") % (vr(vI1, 2), sr(sPD, 4)))
for t in range(R):
    if t == OPT["t01"]:
        e("s_cmp_lg_u32 s%d, 0" % sMODE)
        e("s_cbranch_scc1 L_noew")
        qu_compute()
        stamp("U", (1,))
        e("s_waitcnt vmcnt(%d)" % (2 * t))
        e_write("a")
        e("s_waitcnt lgkmcnt(0)")
        e("s_barrier")
        lab("L_noew")
        stamp("barF", (1,))
    e("s_waitcnt lgkmcnt(%d)" % (R - 1 - t))
    e("v_mov_b32 v%d, v%d" % (vI0, T + 2 * t)); e("v_mov_b32 v%d, v%d" % (vI1, T + 2 * t + 1))
    dma(t)
e("s_cmp_eq_u32 s%d, 0" % sNT)
e("s_cbranch_scc1 L_flush_done")
def rd_idx(t):
    e("ds_read_b32 v%d, v%d offset:%d" % (vI0, vLI, 128 * t))
    e("ds_read_b32 v%d, v%d offset:%d" % (vI1, vLI, 128 * t + 64))
def rd_oh(t):
    e("ds_read_b128 %s, v%d offset:%d" % (vr(OA, 4), vOH, 512 * t))
    e("ds_read_b128 %s, v%d offset:%d" % (vr(OA + 4, 4), vOH, 512 * t + 2 * CS))
def rd_p(slot):
    e("ds_read_b128 %s, v%d offset:%d" % (vr(PA, 4), vP0, SLOT * slot))
    e("ds_read_b128 %s, v%d offset:%d" % (vr(PA + 4, 4), vP1, SLOT * slot))
def rd_s(t):
    for q in range(4): e("ds_read_b64_tr_b16 %s, v%d offset:%d" % (vr(SA + 2 * q, 2), vS, 512 * t + 128 * q))
rd_oh(0); rd_idx(R)
for j in range(8): e("v_mov_b32 v%d, 0" % (MSG + j)); e("v_mov_b32 v%d, 0" % (SA + j))
e("s_waitcnt lgkmcnt(2)")
mfma(Y0, OA, QW, "0"); mfma(Y0, OA + 4, QW + 4, Y0)
rd_oh(1)
e("s_waitcnt vmcnt(%d)" % (2 * (R - 1)))
rd_p(0)
e("s_waitcnt lgkmcnt(0)")
mfma(Y0, PA, ID, Y0); mfma(Y0, PA + 4, ID + 4, Y0)
dma(0)
rd_idx(R + 1)
e("s_waitcnt vmcnt(%d)" % (2 * (R - 1)))
rd_p(1)
e("s_mov_b32 s%d, 0" % sIT)
stamp("loop", (1,))
nop(4)
lab("L_loop")
for u in range(R):
    Yc, Yn = (Y0, Y1) if u % 2 == 0 else (Y1, Y0)
    ex = lambda a, b: [e("v_exp_f32 v%d, v%d" % (EE + j, Yc + j)) for j in range(a, b)]
    rc = lambda a, b: [e("v_rcp_f32 v%d, v%d" % (EE + j, EE + j)) for j in range(a, b)]
    e("s_waitcnt lgkmcnt(0)")
    mfma(Yn, PA, ID, "0")
    setm0(sRB, ((u + 1) % R) * SLOT)
    ex(0, 2)
    e(("buffer_load_dwordx4 %s, %s, 0 idxen offen " + ("sc1 " if OPT["gsc1"] else "") + "lds") % (vr(vI0, 2), sr(sPD, 4)))
    setm0(sRB, ((u + 1) % R) * SLOT + 1024)
    ex(2, 4)
    mfma(Yn, PA + 4, ID + 4, Yn)
    e(("buffer_load_dwordx4 %s, %s, 0 idxen offen " + ("sc1 " if OPT["gsc1"] else "") + "lds") % (vr(vI1, 2), sr(sPD, 4)))
    ex(4, 8)
    mfma(Yn, OA, QW, Yn)
    ex(8, 16)
    for j in range(8): e("v_pk_add_f32 %s, %s, 1.0 op_sel_hi:[1,0]" % (vr(EE + 2 * j, 2), vr(EE + 2 * j, 2)))
    mfma(Yn, OA + 4, QW + 4, Yn)
    rc(0, 4)
    mfma(AGG, MSG, SA, AGG)
    rc(4, 8)
    mfma(AGG, MSG + 4, SA + 4, AGG)
    rd_idx(u + 2 + R)
    rc(8, 10)
    rd_oh(u + 2)
    rc(10, 12)
    rd_s(u)
    rc(12, 14)
    e("s_waitcnt vmcnt(%d)" % (2 * (R - 1)))
    rd_p((u + 2) % R)
    rc(14, 16)
    e("s_add_u32 s%d, s%d, 1" % (sIT, sIT))
    for j in range(8): e("v_pk_mul_f32 %s, %s, %s" % (vr(EE + 2 * j, 2), vr(EE + 2 * j, 2), vr(Yc + 2 * j, 2)))
    e("s_cmp_ge_u32 s%d, s%d" % (sIT, sNT))
    for j in range(8): e("v_cvt_pk_bf16_f32 v%d, v%d, v%d" % (MSG + j, EE + 2 * j, EE + 2 * j + 1))
    if u < R - 1:
        e("s_cbranch_scc1 L_loop_end")
    else:
        e("v_add_u32 v%d, %d, v%d" % (vOH, 512 * R, vOH))
        e("v_add_u32 v%d, %d, v%d" % (vS, 512 * R, vS))
        e("v_add_u32 v%d, %d, v%d" % (vLI, 128 * R, vLI))
        e("s_cbranch_scc0 L_loop")
lab("L_loop_end")
e("s_waitcnt lgkmcnt(0)")
nop(1)
mfma(AGG, MSG, SA, AGG)
mfma(AGG, MSG + 4, SA + 4, AGG)
lab("L_flush_done")
e("s_cmp_lg_u32 s%d, 0" % sMODE)
e("s_cbranch_scc1 L_slow_ret")
lab("L_epi")
stamp("epi", (1,))
e("v_and_b32 v%d, 0x13, v%d" % (T, vL))
e("v_bfe_u32 v%d, v%d, 2, 1" % (T + 1, vL))
e("v_lshl_or_b32 v%d, v%d, 3, v%d" % (T, T + 1, T))
e("v_bfe_u32 v%d, v%d, 3, 1" % (T + 1, vL))
e("v_lshl_or_b32 v%d, v%d, 2, v%d" % (T, T + 1, T))
e("v_bfe_u32 v%d, v%d, 2, 2" % (T + 1, T))
e("v_lshlrev_b32 v%d, 4, v%d" % (T + 1, T + 1))
e("v_lshl_add_u32 v%d, v%d, 6, v%d" % (T, T, T + 1))
e("v_lshrrev_b32 v%d, 5, v%d" % (T + 1, vL))
e("v_lshl_add_u32 v%d, v%d, 3, v%d" % (T, T + 1, T))
e("v_add_u32 v%d, s%d, v%d" % (T, sRB, T))
for i in range(1, 4): e("v_xor_b32 v%d, %d, v%d" % (T + i, 16 * i, T))
for j in range(8): e("v_pk_mul_f32 %s, %s, %s" % (vr(AGG + 2 * j, 2), vr(AGG + 2 * j, 2), sr(sC2)))
for j in range(8): e("v_cvt_pk_bf16_f32 v%d, v%d, v%d" % (MSG + j, AGG + 2 * j, AGG + 2 * j + 1))
e("s_waitcnt vmcnt(0)")
for i in range(4): e("ds_write_b64 v%d, %s" % (T + i, vr(MSG + 2 * i, 2)))
e("s_waitcnt lgkmcnt(0)")
e("s_barrier")
tile_frag(XF, L_RING, 2048)
for j in range(8):
    e("s_waitcnt lgkmcnt(%d)" % (7 - j))
    mfma(U, W1F + 4 * j, XF + 4 * j, U)
node_idx(2)
tr_addr(sRB, SLOT)
srd(sXD, sOUT, 256, N)
for j in range(8): e("v_pk_mul_f32 %s, %s, %s" % (vr(EE + 2 * j, 2), vr(U + 2 * j, 2), sr(sC1)))
for j in range(16): e("v_exp_f32 v%d, v%d" % (EE + j, EE + j))
for j in range(8): e("v_pk_add_f32 %s, %s, 1.0 op_sel_hi:[1,0]" % (vr(EE + 2 * j, 2), vr(EE + 2 * j, 2)))
for j in range(16): e("v_rcp_f32 v%d, v%d" % (EE + j, EE + j))
for j in range(8): e("v_pk_mul_f32 %s, %s, %s" % (vr(EE + 2 * j, 2), vr(EE + 2 * j, 2), vr(U + 2 * j, 2)))
for j in range(8): e("v_cvt_pk_bf16_f32 v%d, v%d, v%d" % (MSG + j, EE + 2 * j, EE + 2 * j + 1))
tr_store(MSG, sXD, "")
e("s_or_b32 s%d, s2, s%d" % (sTMP, sW))
e("s_cbranch_scc1 L_noep")
e("v_mov_b32 v%d, 0" % (T + 1))
e("v_mov_b32 v%d, s%d" % (T + 2, sE1))
e("s_mov_b64 exec, 1")
e("global_store_dword v%d, v%d, %s sc1" % (T + 1, T + 2, sr(sWS)))
e("s_mov_b64 exec, -1")
lab("L_noep")
if OPT["stamps"]:
    e("s_mov_b64 exec, -1")
    e("s_waitcnt vmcnt(0)")
    stamp("end", (1,2,3,4))
    e("v_mov_b32 v%d, s%d" % (vST + 14, sSPIN)); e("v_mov_b32 v%d, s%d" % (vST + 15, sNT))
    e("s_lshl_b32 s%d, s2, 3" % sTMP); e("s_add_u32 s%d, s%d, s%d" % (sTMP, sTMP, sW))
    e("s_lshl_b32 s%d, s%d, 6" % (sTMP, sTMP)); e("s_add_u32 s%d, s%d, 0x%x" % (sTMP, sTMP, W_STAMP))
    e("v_mov_b32 v%d, s%d" % (T, sTMP))
    e("s_mov_b64 exec, 1")
    if OPT["dbg"]:
        e("v_not_b32 v%d, v%d" % (vST + 15, vST))
        e("v_mov_b32 v%d, 0" % T)
        for j in range(16): e("global_atomic_umax v%d, v%d, %s offset:%d sc1" % (T, vST + j, sr(sDBG), 4 * j))
    else:
        for j in range(4): e("global_store_dwordx4 v%d, %s, %s offset:%d" % (T, vr(vST + 4 * j, 4), sr(sWS), 16 * j))
lab("L_end")
e("s_endpgm")

lab("L_pub_more")
e("ds_read_b128 %s, v%d offset:64" % (vr(MSG, 4), T + 19))
e("ds_read_b128 %s, v%d offset:96" % (vr(MSG + 4, 4), T + 19))
e("v_add_u32 v%d, 0x400000, v%d" % (T + 10, T + 23))
e("v_add_u32 v%d, 0x600000, v%d" % (T + 11, T + 23))
e("s_waitcnt lgkmcnt(0)")
e("v_mov_b32 v%d, s%d" % (MSG + 3, sT))
e("v_mov_b32 v%d, s%d" % (MSG + 7, sT))
e("global_store_dwordx4 v%d, %s, %s sc1" % (T + 10, vr(MSG, 4), sr(sWS)))
e("global_store_dwordx4 v%d, %s, %s sc1" % (T + 11, vr(MSG + 4, 4), sr(sWS)))
e("s_mov_b32 s%d, 2" % sLVL)
e("s_branch L_pub1")

lab("L_nextlevel")
e("s_cmp_lg_u32 s%d, 0" % sLVL)
e("s_cbranch_scc0 L_nl1")
e("s_mov_b32 s%d, 1" % sMODE)
e("s_branch L_flags")
lab("L_nl1")
e_load("b")
e("s_waitcnt vmcnt(0)")
e_write("b")
e("s_lshr_b64 %s, %s, 1" % (sr(sQ), sr(sNA)))
e("s_or_b64 %s, %s, %s" % (sr(sNA), sr(sNA), sr(sQ)))
e("s_mov_b32 s%d, 1" % sLVL)
e("v_add_u32 v%d, 0x400000, v%d" % (vSWP, vSWP))
e("s_waitcnt lgkmcnt(0)")
e("s_branch L_level")

lab("L_slow")
e("s_waitcnt vmcnt(0)")
qu_compute()
e("s_barrier")
srd(sDD, sDST, 0, E * 4)
srd(sSD, sSRC, 0, E * 4)
e("s_cmp_lg_u32 s%d, 2" % sMODE)
e("s_cbranch_scc1 L_scan")
for j in range(4): e("v_mov_b32 v%d, -1" % (T + j))
e("v_lshrrev_b32 v%d, 1, v0" % (T + 10))
e("v_and_b32 v%d, 1, v0" % (T + 11))
e("v_lshlrev_b32 v%d, 4, v%d" % (T + 11, T + 11))
e("s_lshl_b32 s%d, s2, 5" % sTMP)
e("s_add_u32 s%d, s%d, 0x%x" % (sTMP, sTMP, W_SLOT))
e("v_lshl_add_u32 v%d, v%d, 13, v%d" % (T + 14, T + 10, T + 11))
e("v_add_u32 v%d, s%d, v%d" % (T + 14, sTMP, T + 14))
for p in range(4):
    e("global_store_dwordx4 v%d, %s, %s sc1" % (T + 14, vr(T, 4), sr(sWS)))
    e("v_add_u32 v%d, 0x200000, v%d" % (T + 14, T + 14))
e("s_lshl_b32 s%d, s2, 5" % sTMP)
e("s_add_u32 s%d, s%d, 0x%x" % (sTMP, sTMP, W_FLAG))
e("v_and_b32 v%d, 7, v0" % (T + 10))
e("v_lshl_add_u32 v%d, v%d, 13, s%d" % (T + 10, T + 10, sTMP))
e("global_store_dwordx2 v%d, %s, %s sc1" % (T + 10, vr(T, 2), sr(sWS)))
w_dma(sWM, 0, L_C)
e("s_waitcnt vmcnt(0)")
e("s_barrier")
w_frag(WT, vWP, L_C)
e("s_mov_b32 s%d, 0" % sCP)
lab("L_pall")
e("s_barrier")
node_idx(sCP)
x_dma()
e("s_waitcnt vmcnt(0)")
e("s_barrier")
tile_frag(XF, L_X, 2048)
e("s_waitcnt lgkmcnt(0)")
p_compute(WT)
e("s_add_u32 s%d, s%d, 1" % (sCP, sCP))
e("s_cmp_lt_u32 s%d, 256" % sCP)
e("s_cbranch_scc1 L_pall")
e("s_waitcnt vmcnt(0)")
lab("L_scan")
e("s_mov_b32 s%d, 0" % sSTEP)
e("s_mov_b64 %s, 0" % sr(sPEND))
vR, vE = XF, XF + 1
lab("L_scan_reset")
e("s_barrier")
reset_lists("b")
e("s_waitcnt lgkmcnt(0)")
e("s_barrier")
e("s_cmp_lg_u32 s%d, 3" % sMODE)
e("s_cbranch_scc0 L_scan_retry")
lab("L_scan_step")
e("v_add_u32 v%d, s%d, v0" % (vE, sSTEP))
e("v_lshlrev_b32 v%d, 2, v%d" % (T + 2, vE))
e("buffer_load_dword v%d, v%d, %s, 0 offen" % (T + 10, T + 2, sr(sDD, 4)))
e("buffer_load_dword v%d, v%d, %s, 0 offen" % (T + 11, T + 2, sr(sSD, 4)))
e("s_add_u32 s%d, s%d, 512" % (sSTEP, sSTEP))
e("v_cmp_gt_u32 %s, %d, v%d" % ("vcc", E, vE))
e("s_mov_b64 %s, vcc" % sr(sPEND))
e("s_waitcnt vmcnt(0)")
make_rec(T + 10, T + 11, vR, T, T + 1)
e("v_and_b32 v%d, 255, v%d" % (T + 10, T + 10))
e("v_cmp_eq_u32 vcc, s2, v%d" % (T + 10))
e("s_and_b64 %s, %s, vcc" % (sr(sPEND), sr(sPEND)))
lab("L_scan_retry")
e("s_mov_b64 exec, %s" % sr(sPEND))
e("s_cbranch_execz L_scan_b")
e("v_mov_b32 v%d, v%d" % (RE, vE))
rec_a(vR, RN, RE, EV)
e("s_waitcnt lgkmcnt(0)")
e("v_cmp_gt_u32 vcc, %d, v%d" % (CAP, RN))
e("s_andn2_b64 %s, %s, vcc" % (sr(sPEND), sr(sPEND)))
e("s_and_b64 exec, exec, vcc")
rec_b(vR, RN, T, T + 1)
e("s_waitcnt vmcnt(0)")
e("ds_write_b64 v%d, %s offset:%d" % (RN, vr(EV, 2), 3 * CS))
lab("L_scan_b")
e("s_mov_b64 exec, -1")
e("s_waitcnt lgkmcnt(0)")
e("s_barrier")
e("v_mov_b32 v%d, %d" % (T, L_CNT2))
e("ds_read_b64 %s, v%d" % (vr(T + 4, 2), T))
e("s_waitcnt lgkmcnt(0)")
e("v_max_u32 v%d, v%d, v%d" % (T + 7, T + 4, T + 5))
nop(1)
e("v_readfirstlane_b32 s%d, v%d" % (sTMP, T + 7))
e("s_mov_b32 s%d, 3" % sMODE)
e("s_cmp_gt_u32 s%d, %d" % (sTMP, CAP))
e("s_cbranch_scc1 L_flush")
e("s_mov_b32 s%d, 4" % sMODE)
e("s_cmp_ge_u32 s%d, %d" % (sSTEP, E))
e("s_cbranch_scc1 L_flush")
e("s_barrier")
e("s_branch L_scan_step")
lab("L_slow_ret")
e("s_waitcnt vmcnt(0)")
e("s_cmp_eq_u32 s%d, 4" % sMODE)
e("s_cbranch_scc1 L_epi")
e("s_branch L_scan_reset")
lab("L_codeend")

out.append('.section .rodata,"a"'); out.append(".p2align 6")
out.append(".amdhsa_kernel " + KN)
for l in ["next_free_vgpr 256", "next_free_sgpr 102", "accum_offset 256", "group_segment_fixed_size 0", "kernarg_size 72",
          "user_sgpr_count 2", "user_sgpr_kernarg_segment_ptr 1", "system_sgpr_workgroup_id_x 1"]:
    out.append("  .amdhsa_" + l)
out.append(".end_amdhsa_kernel")
if OPT["stamps"]: print(" ".join("t%d=%s" % (i, n) for i, n in enumerate(snames)))
open(sys.argv[1], "w").write("\n".join(out) + "\n")
```

```python
import sys
KN = "gather_scatter__mpnn_edge_mlp__graph_kernel"
OPT = dict(stamps=0, force_mode=0, spin=2000, gsc1=0, pf=1, epf=1, wu1=0, t01=2, wpf=1, dbg=0, enc=-1, of=0)
for a in sys.argv[2:]:
    k, v = a.split("="); OPT[k] = int(v)

N, E = 10000, 160000
CH = 625
CAP = 448
CS = CAP * 16 + 64
R = 4
L_OH, L_LIST, LSTR = 0, 8 * CS, 2560
L_CNT = L_LIST + 2 * LSTR
L_CNT2 = L_CNT + 1024
L_MODE = L_CNT2 + 8
L_EPOCH = L_CNT2 + 12
L_X = 32768
L_RING = 65536
L_A, L_B, L_C = L_RING, L_RING + 32768, 131072
SLOT = 16384
LDS = 163840
W_FLAG, W_P, W_SLOT, W_STAMP = 0x10000, 0x80000, 0x400000, 0x1000000
SENT = 0x3FFFFFFF
NLOG2E = 0xBFB8AA3B
NLN2 = 0xBF317218

out = []
def e(s): out.append("    " + s)
def lab(s): out.append(s + ":")
def nop(n): e("s_nop %d" % (n - 1))

class Al:
    def __init__(s, start): s.n = start
    def __call__(s, cnt=1, al=1):
        s.n = (s.n + al - 1) // al * al
        r = s.n; s.n += cnt; return r
va = Al(1)
def vr(b, n): return "v[%d:%d]" % (b, b + n - 1)
def sr(b, n=2): return "s[%d:%d]" % (b, b + n - 1)

sX, sEA, sSRC, sDST, sWM, sWU, sOUT, sDBG, sWS = 4, 6, 8, 10, 12, 14, 16, 18, 20
sXD, sPD, sED, sDD, sSD = 24, 28, 32, 36, 40
sW, sSB, sCB, sT, sE1, sNT, sIT, sMODE, sLVL, sSTEP, sRB, sCP, sTMP, sTMP2, sSPIN = range(44, 59)
sM = 60
sNA, sVA, sVB, sNB, sPA, sPB, sODD, sQ, sQ2, sPEND, sNV = 72, 74, 76, 78, 80, 82, 84, 86, 88, 90, 92
sC1, sC2 = 94, 96
sST = 98
vL = va(); vDO = va(); vAS0 = va(); vAS1 = va(); vWN = va(); vWP = va()
vP0 = va(); vP1 = va(); vOH = va(); vS = va(); vLI = va(); vTW = va(); vSW = va(); vCB = va(); vONE = va(); vFA = va(); vBF1 = va(); vEB = va(); vSL = va()
vI0 = va(2, 2); vI1 = va(2, 2)
T = va(24, 4)
Y0 = va(16, 4); Y1 = va(16, 4); EE = va(16, 4); MSG = va(8, 4); AGG = va(16, 4); U = va(16, 4)
QW = va(8, 4); ID = va(8, 4); PA = va(8, 4); OA = va(8, 4); SA = va(8, 4)
W1F = va(32, 4); XF = va(32, 4)
WT = Y0
stampn = [0]
vST = va(16, 4)
assert va.n <= 256, va.n

snames = ["start"]
def stamp(name="?", sets=(1,)):
    if OPT["stamps"] not in sets: return
    snames.append(name)
    i = stampn[0]; stampn[0] += 1
    e("s_memrealtime %s" % sr(sST)); e("s_waitcnt lgkmcnt(0)"); e("v_mov_b32 v%d, s%d" % (vST + i, sST))

def mfma(d, a, b, c):
    e("v_mfma_f32_32x32x16_bf16 %s, %s, %s, %s" % (vr(d, 16), vr(a, 4), vr(b, 4), c if isinstance(c, str) else vr(c, 16)))

def setm0(val_s=None, imm=0):
    if val_s is None: e("s_mov_b32 m0, 0x%x" % imm)
    elif imm == 0: e("s_mov_b32 m0, s%d" % val_s)
    else: e("s_add_u32 m0, s%d, 0x%x" % (val_s, imm))

def w_dma(sbase, rowoff, ldsbase):
    for i in range(4):
        e("s_add_u32 m0, s%d, 0x%x" % (sTMP2, ldsbase + i * 1024))
        e("v_add_u32 v%d, 0x%x, v%d" % (T + 20, rowoff * 256 + i * 4096, vSW))
        e("global_load_lds_dwordx4 v%d, %s" % (T + 20, sr(sbase)))

def w_frag(dst, vaddr, ldsbase):
    e("v_add_u32 v%d, 0x%x, v%d" % (T + 20, ldsbase, vaddr))
    for j in range(8):
        for u in range(2):
            e("ds_read_b64_tr_b16 %s, v%d offset:%d" % (vr(dst + 4 * j + 2 * u, 2), T + 20, j * 1024 + u * 256))

def tile_frag(dst, sbase_imm, segstride):
    e("s_mul_i32 s%d, s%d, %d" % (sTMP, sSB, 4 * segstride))
    e("s_add_u32 s%d, s%d, 0x%x" % (sTMP, sTMP, sbase_imm))
    e("v_add_u32 v%d, s%d, v%d" % (T + 21, sTMP, vAS0))
    e("v_add_u32 v%d, s%d, v%d" % (T + 22, sTMP, vAS1))
    for j in range(8):
        e("ds_read_b128 %s, v%d offset:%d" % (vr(dst + 4 * j, 4), T + 21 + (j & 1), (j >> 1) * segstride))

def node_idx(schunk):
    e("v_lshrrev_b32 v%d, 2, v%d" % (T, vL))
    e("s_lshl_b32 s%d, s%d, 8" % (sTMP, sSB))
    e("s_add_u32 s%d, s%d, s%d" % (sTMP, sTMP, schunk))
    e("v_lshl_add_u32 v%d, v%d, 9, s%d" % (vI0, T, sTMP))
    e("v_add_u32 v%d, 0x2000, v%d" % (vI1, vI0))

def x_dma():
    e("s_lshl_b32 s%d, s%d, 11" % (sTMP, sW))
    e("s_add_u32 m0, s%d, 0x%x" % (sTMP, L_X))
    nop(1)
    e("buffer_load_dwordx4 %s, %s, 0 idxen offen lds" % (vr(vI0, 2), sr(sXD, 4)))
    e("s_add_u32 m0, s%d, 0x%x" % (sTMP, L_X + 1024))
    nop(1)
    e("buffer_load_dwordx4 %s, %s, 0 idxen offen lds" % (vr(vI1, 2), sr(sXD, 4)))

def srd(d, base, stride, nrec, add=0):
    if add:
        e("s_add_u32 s%d, s%d, 0x%x" % (d, base, add))
        e("s_addc_u32 s%d, s%d, 0" % (d + 1, base + 1))
        if stride: e("s_or_b32 s%d, s%d, 0x%x" % (d + 1, d + 1, stride << 16))
    else:
        e("s_mov_b32 s%d, s%d" % (d, base))
        if stride: e("s_or_b32 s%d, s%d, 0x%x" % (d + 1, base + 1, stride << 16))
        else: e("s_mov_b32 s%d, s%d" % (d + 1, base + 1))
    e("s_mov_b32 s%d, %d" % (d + 2, nrec))
    e("s_mov_b32 s%d, 0x20000" % (d + 3))

def tr_addr(sbase, imm):
    e("s_add_u32 s%d, s%d, 0x%x" % (sTMP, sbase, imm))
    e("v_add_u32 v%d, s%d, v%d" % (T + 8, sTMP, vTW))
    e("v_xor_b32 v%d, 16, v%d" % (T + 9, T + 8))
    e("v_lshl_add_u32 v%d, v%d, 4, s%d" % (T + 10, vL, sTMP))

def tr_store(src, srdreg, flags):
    e("ds_write_b128 v%d, %s" % (T + 8, vr(src, 4)))
    e("ds_write_b128 v%d, %s" % (T + 9, vr(src + 4, 4)))
    e("ds_read_b128 %s, v%d" % (vr(src, 4), T + 10))
    e("ds_read_b128 %s, v%d offset:1024" % (vr(src + 4, 4), T + 10))
    e("s_waitcnt lgkmcnt(1)")
    e("buffer_store_dwordx4 %s, %s, %s, 0 idxen offen%s" % (vr(src, 4), vr(vI0, 2), sr(srdreg, 4), flags))
    e("s_waitcnt lgkmcnt(0)")
    e("buffer_store_dwordx4 %s, %s, %s, 0 idxen offen%s" % (vr(src + 4, 4), vr(vI1, 2), sr(srdreg, 4), flags))

def p_compute(wf=None, fused=False):
    wf = W1F if wf is None else wf
    if fused:
        e("s_lshl_b32 s%d, s%d, 13" % (sTMP, sSB))
        e("s_add_u32 s%d, s%d, 0x%x" % (sTMP, sTMP, L_X))
        e("v_add_u32 v%d, s%d, v%d" % (T + 21, sTMP, vAS0))
        e("v_add_u32 v%d, s%d, v%d" % (T + 22, sTMP, vAS1))
        e("v_add_u32 v%d, 0x%x, v%d" % (T + 20, L_B, vWP))
        def rd(j):
            e("ds_read_b128 %s, v%d offset:%d" % (vr(XF + 4 * j, 4), T + 21 + (j & 1), (j >> 1) * 2048))
            for u in range(2):
                e("ds_read_b64_tr_b16 %s, v%d offset:%d" % (vr(wf + 4 * j + 2 * u, 2), T + 20, j * 1024 + u * 256))
        for j in range(5): rd(j)
        for j in range(8):
            e("s_waitcnt lgkmcnt(%d)" % (3 * min(4, 7 - j)))
            mfma(EE, wf + 4 * j, XF + 4 * j, "0" if j == 0 else EE)
            if j + 5 < 8: rd(j + 5)
        e("s_barrier")
        stamp("barC0", (2,))
    else:
        for j in range(8):
            mfma(EE, wf + 4 * j, XF + 4 * j, "0" if j == 0 else EE)
    tr_addr(sTMP2, L_B)
    nop(8)
    for j in range(8):
        e("v_pk_mul_f32 %s, %s, %s" % (vr(EE + 2 * j, 2), vr(EE + 2 * j, 2), sr(sC1)))
    for j in range(8):
        e("v_cvt_pk_bf16_f32 v%d, v%d, v%d" % (MSG + j, EE + 2 * j, EE + 2 * j + 1))
    if fused and OPT["stamps"] == 4:
        stamp("cvt", (4,)); e("s_waitcnt vmcnt(0)"); stamp("puback", (4,))
    tr_store(MSG, sPD, " sc1")
    if fused and OPT["stamps"] == 4:
        stamp("pst", (4,)); e("s_waitcnt vmcnt(0)"); stamp("pack0", (4,))

def qu_compute():
    w_frag(WT, vWN, L_B)
    e("v_add_u32 v%d, 0x%x, v%d" % (T + 21, L_C, vWP))
    for j in range(4): e("v_mov_b32 v%d, 0" % (MSG + j))
    e("v_and_b32 v%d, 31, v%d" % (T + 22, vL))
    e("s_lshl_b32 s%d, s%d, 6" % (sTMP, sCB))
    e("v_lshl_add_u32 v%d, v%d, 1, s%d" % (T + 22, T + 22, sTMP))
    def rl(j):
        for u in range(2):
            e("ds_read_b64_tr_b16 %s, v%d offset:%d" % (vr(WT + 4 * j + 2 * u, 2), T + 21, j * 1024 + u * 256))
    for j in range(8):
        e("s_waitcnt lgkmcnt(%d)" % (14 if j == 0 else 12))
        mfma(AGG, XF + 4 * j, WT + 4 * j, "0" if j == 0 else AGG)
        if j: rl(j - 1)
    for j in range(8):
        e("s_waitcnt lgkmcnt(%d)" % (12 if j == 0 else (4 if j == 7 else 2 * (6 - j) + 2 + min(j - 1, 4))))
        mfma(U, WT + 4 * j, XF + 4 * j, "0" if j == 0 else U)
        if j == 0: rl(7)
        elif j <= 4: e("ds_read_u16_d16_hi v%d, v%d offset:%d" % (MSG + j - 1, T + 22, L_CNT + 256 * (j - 1)))
    e("s_waitcnt lgkmcnt(0)")
    e("s_mov_b32 exec_lo, 0")
    for j in range(4): e("v_mov_b32 v%d, v%d" % (AGG + 8 + j, MSG + j))
    e("s_mov_b32 exec_lo, -1")
    for j in range(8): e("v_pk_mul_f32 %s, %s, %s" % (vr(AGG + 2 * j, 2), vr(AGG + 2 * j, 2), sr(sC1)))
    for j in range(8): e("v_cvt_pk_bf16_f32 v%d, v%d, v%d" % (QW + j, AGG + 2 * j, AGG + 2 * j + 1))
    for j in range(16): e("v_mov_b32 v%d, 0" % (AGG + j))

def reset_lists(tag):
    for j in range(4): e("v_mov_b32 v%d, 0" % (T + j))
    e("v_lshlrev_b32 v%d, 4, v0" % (T + 8))
    for j in range(7): e("ds_write_b128 v%d, %s offset:%d" % (T + 8, vr(T, 4), j * 8192))
    e("v_cmp_lt_u32 vcc, 31, v0")
    nop(2)
    e("v_cndmask_b32_e64 v%d, 0, -1, vcc" % (T + 4))
    for j in range(1, 4): e("v_mov_b32 v%d, v%d" % (T + 4 + j, T + 4))
    e("v_cmp_gt_u32 vcc, 352, v0")
    e("s_and_b64 exec, vcc, -1")
    e("s_cbranch_execz L_rl_%s" % tag)
    e("ds_write_b128 v%d, %s offset:%d" % (T + 8, vr(T + 4, 4), 7 * 8192))
    lab("L_rl_%s" % tag)
    e("s_mov_b64 exec, -1")
    e("v_mov_b32 v%d, %d" % (T + 8, L_CNT2))
    e("ds_write_b64 v%d, %s" % (T + 8, vr(T, 2)))

def rec_a(x, n, eid, ev):
    e("v_bfe_u32 v%d, v%d, 19, 1" % (n, x))
    e("v_lshlrev_b32 v%d, 2, v%d" % (n, n))
    e("ds_add_rtn_u32 v%d, v%d, v%d offset:%d" % (n, n, vONE, L_CNT2))
    if ev is None: return
    e("v_lshlrev_b32 v%d, 3, v%d" % (eid, eid))
    e("buffer_load_dwordx2 %s, v%d, %s, 0 offen" % (vr(ev, 2), eid, sr(sED, 4)))

def rec_b(x, n, t0, t1):
    e("v_bfe_u32 v%d, v%d, 19, 1" % (t0, x))
    e("v_mul_u32_u24 v%d, %d, v%d" % (t1, LSTR // 4, t0))
    e("v_add_lshl_u32 v%d, v%d, v%d, 2" % (t1, t1, n))
    e("v_lshlrev_b32 v%d, 4, v%d" % (n, n))
    e("v_and_b32 v%d, 0x3fff, v%d" % (vFA, x))
    e("ds_write_b32 v%d, v%d offset:%d" % (t1, vFA, L_LIST))
    e("v_bfe_u32 v%d, v%d, 17, 3" % (t1, x))
    e("v_mad_u32_u24 v%d, v%d, v%d, v%d" % (t1, t1, vCB, n))
    e("v_bfe_u32 v%d, v%d, 14, 3" % (vFA, x))
    e("v_lshl_add_u32 v%d, v%d, 1, v%d" % (t1, vFA, t1))
    e("ds_write_b16 v%d, v%d" % (t1, vBF1))
    e("v_lshlrev_b32 v%d, 2, v%d" % (t0, t0))
    e("v_mad_u32_u24 v%d, v%d, v%d, v%d" % (n, t0, vCB, n))

def make_rec(dst, src, rec, t0, t1):
    e("v_bfe_u32 v%d, v%d, 9, 5" % (t0, dst))
    e("v_and_b32 v%d, 0x13, v%d" % (rec, t0))
    e("v_and_b32 v%d, 4, v%d" % (t1, t0))
    e("v_lshl_or_b32 v%d, v%d, 1, v%d" % (rec, t1, rec))
    e("v_bfe_u32 v%d, v%d, 3, 1" % (t1, t0))
    e("v_lshl_or_b32 v%d, v%d, 2, v%d" % (rec, t1, rec))
    e("v_bfe_u32 v%d, v%d, 8, 1" % (t1, dst))
    e("v_lshl_or_b32 v%d, v%d, 5, v%d" % (rec, t1, rec))
    e("v_and_b32 v%d, 0x3fff, v%d" % (t1, src))
    e("v_lshl_or_b32 v%d, v%d, 14, v%d" % (rec, rec, t1))

out.append("; @launch grid=(256,1,1) block=(512,1,1) lds=%d" % LDS)
out.append('.amdgcn_target "amdgcn-amd-amdhsa--gfx950"')
out.append(".text"); out.append(".globl " + KN); out.append(".p2align 8"); out.append(".type %s,@function" % KN)
lab(KN)
e("s_cmp_ge_u32 s2, 256")
e("s_cbranch_scc1 L_end")
e("s_load_dwordx16 s[4:19], s[0:1], 0")
e("s_load_dwordx2 s[20:21], s[0:1], 64")
if OPT["stamps"]:
    e("s_memrealtime %s" % sr(sST))
e("v_lshrrev_b32 v%d, 6, v0" % T)
e("v_and_b32 v%d, 63, v0" % vL)
e("v_readfirstlane_b32 s%d, v%d" % (sW, T))
if OPT["pf"]:
    e("s_sub_u32 s%d, s%d, 3" % (sTMP, sW))
    e("s_cmp_gt_u32 s%d, 1" % sTMP)
    e("s_cbranch_scc1 L_nopf")
    e("s_getpc_b64 %s" % sr(sQ))
    lab("L_pc")
    e("v_and_b32 v%d, 127, v0" % (T + 18))
    e("v_lshlrev_b32 v%d, 7, v%d" % (T + 18, T + 18))
    e("v_min_u32 v%d, L_codeend-L_pc-4, v%d" % (T + 18, T + 18))
    e("global_load_dword v%d, v%d, %s" % (T + 18, T + 18, sr(sQ)))
    lab("L_nopf")
e("s_mul_i32 s%d, s2, %d" % (sTMP, CH * 4))
e("v_lshl_add_u32 v%d, v0, 2, s%d" % (T + 16, sTMP))
e("s_lshr_b32 s%d, s%d, 2" % (sSB, sW))
e("s_and_b32 s%d, s%d, 3" % (sCB, sW))
for j in range(4): e("v_mov_b32 v%d, 0x%x" % (T + 4 + j, SENT))
e("v_lshlrev_b32 v%d, 4, v0" % (T + 8))
e("v_mov_b32 v%d, 0" % (T + 17))
e("v_lshlrev_b32 v%d, 2, v0" % (T + 9))
e("v_lshrrev_b32 v%d, 4, v%d" % (T, vL))
e("v_xor_b32 v%d, v%d, v%d" % (T + 1, T, vL))
e("v_and_b32 v%d, 3, v%d" % (T + 1, T + 1))
e("s_lshl_b32 s%d, s%d, 6" % (sTMP, sCB))
e("v_lshl_add_u32 v%d, v%d, 4, s%d" % (vI0 + 1, T + 1, sTMP))
e("v_mov_b32 v%d, v%d" % (vI1 + 1, vI0 + 1))
e("v_lshrrev_b32 v%d, 2, v%d" % (T + 1, vL))
e("v_and_b32 v%d, 3, v%d" % (T + 2, vL))
e("v_lshlrev_b32 v%d, 8, v%d" % (T + 1, T + 1))
e("v_lshl_add_u32 v%d, v%d, 4, v%d" % (T + 1, T + 2, T + 1))
e("s_lshl_b32 s%d, s%d, 14" % (sTMP2, sSB))
e("s_add_u32 s%d, s%d, s%d" % (sTMP, sTMP, sTMP2))
e("v_add_u32 v%d, s%d, v%d" % (vSW, sTMP, T + 1))
e("s_lshl_b32 s%d, s%d, 13" % (sTMP2, sCB))
e("s_lshl_b32 s%d, s%d, 12" % (sTMP, sSB))
e("s_add_u32 s%d, s%d, s%d" % (sTMP2, sTMP2, sTMP))
e("v_cmp_gt_u32 %s, %d, v0" % ("vcc", CH - 512))
e("s_mov_b64 %s, vcc" % sr(sQ2))
node_idx(2)
e("s_waitcnt lgkmcnt(0)")
if OPT["stamps"]:
    e("v_mov_b32 v%d, s%d" % (vST, sST)); stampn[0] = 1
stamp("karg", (1,2,3))
e("global_load_dword v%d, v%d, %s" % (T + 10, T + 16, sr(sDST)))
e("global_load_dword v%d, v%d, %s" % (T + 11, T + 16, sr(sSRC)))
srd(sXD, sX, 256, N)
e("s_cmp_ge_u32 s%d, 2" % sW)
e("s_cbranch_scc1 L_no2")
e("s_mov_b64 exec, %s" % sr(sQ2))
e("global_load_dword v%d, v%d, %s offset:2048" % (T + 12, T + 16, sr(sDST)))
e("global_load_dword v%d, v%d, %s offset:2048" % (T + 13, T + 16, sr(sSRC)))
e("s_mov_b64 exec, -1")
e("s_branch L_nowpf")
lab("L_no2")
e("s_lshr_b32 s%d, s2, 3" % sTMP)
e("s_cmp_lg_u32 s%d, 2" % sW)
e("s_cbranch_scc1 L_noe")
e("global_load_dword v%d, v%d, %s sc1" % (T + 15, T + 17, sr(sWS)))
lab("L_noe")
e("s_cmp_lg_u32 s%d, 7" % sW)
e("s_cbranch_scc1 L_nw7")
e("s_lshl_b32 s%d, s%d, 11" % (sQ, sTMP))
e("v_lshl_add_u32 v%d, v%d, 5, s%d" % (T + 21, vL, sQ))
e("global_load_dword v%d, v%d, %s" % (T + 21, T + 21, sr(sWU)))
lab("L_nw7")
e("s_cmp_lg_u32 s%d, 6" % sW)
e("s_cbranch_scc1 L_nw6")
e("s_mul_i32 s%d, s%d, 2080" % (sQ, sTMP))
e("v_lshl_add_u32 v%d, v%d, 5, s%d" % (T + 21, vL, sQ))
e("global_load_dword v%d, v%d, %s offset:60" % (T + 21, T + 21, sr(sWM)))
lab("L_nw6")
e("s_cmp_lg_u32 s%d, 5" % sW)
e("s_cbranch_scc1 L_nowpf")
e("s_mul_i32 s%d, s2, %d" % (sQ, CH * 8))
e("v_mul_u32_u24 v%d, 76, v%d" % (T + 21, vL))
e("v_add_u32 v%d, s%d, v%d" % (T + 21, sQ, T + 21))
e("global_load_dword v%d, v%d, %s offset:104" % (T + 21, T + 21, sr(sEA)))
lab("L_nowpf")
x_dma()
e("ds_write_b32 v%d, v%d offset:%d" % (T + 9, T + 17, L_CNT))
for j in range(4): e("ds_write_b128 v%d, %s offset:%d" % (T + 8, vr(T + 4, 4), j * 8192))
e("v_mov_b32 v%d, 1" % vONE)
e("v_lshrrev_b32 v%d, 1, v0" % (T + 4))
e("v_and_b32 v%d, 1, v0" % (T + 5))
e("v_lshlrev_b32 v%d, 4, v%d" % (T + 5, T + 5))
e("v_lshl_add_u32 v%d, v%d, 7, v%d" % (T + 19, T + 4, T + 5))
e("v_lshlrev_b32 v%d, 2, v%d" % (T + 22, T + 4))
e("s_lshl_b32 s%d, s2, 5" % sTMP)
e("s_add_u32 s%d, s%d, 0x%x" % (sTMP, sTMP, W_SLOT))
e("v_lshl_add_u32 v%d, v%d, 13, v%d" % (T + 23, T + 4, T + 5))
e("v_add_u32 v%d, s%d, v%d" % (T + 23, sTMP, T + 23))
e("v_mov_b32 v%d, %d" % (T + 14, L_EPOCH))
stamp("pre", (3,))
w_dma(sWM, 0, L_B)
stamp("w1iss", (3,))
e("s_waitcnt lgkmcnt(0)")
e("s_barrier")
stamp("bar0", (1,2,3))
e("s_waitcnt vmcnt(6)")
stamp("dst", (1,3))
e("v_and_b32 v%d, 255, v%d" % (T + 8, T + 10))
e("v_lshlrev_b32 v%d, 2, v%d" % (T + 2, T + 8))
e("ds_add_rtn_u32 v%d, v%d, v%d offset:%d" % (T + 6, T + 2, vONE, L_CNT))
e("s_cmp_ge_u32 s%d, 2" % sW)
e("s_cbranch_scc1 L_rank1")
e("s_mov_b64 exec, %s" % sr(sQ2))
e("v_and_b32 v%d, 255, v%d" % (T + 9, T + 12))
e("v_lshlrev_b32 v%d, 2, v%d" % (T + 2, T + 9))
e("ds_add_rtn_u32 v%d, v%d, v%d offset:%d" % (T + 7, T + 2, vONE, L_CNT))
make_rec(T + 12, T + 13, T + 5, T, T + 1)
e("v_add_u32 v%d, 512, v0" % T)
e("v_lshl_or_b32 v%d, v%d, 20, v%d" % (T + 5, T, T + 5))
e("s_mov_b64 exec, -1")
make_rec(T + 10, T + 11, T + 4, T, T + 1)
e("v_lshl_or_b32 v%d, v0, 20, v%d" % (T + 4, T + 4))
e("s_mov_b64 exec, %s" % sr(sQ2))
e("s_waitcnt lgkmcnt(0)")
def put_rec(b, r, rec):
    e("v_cmp_gt_u32 vcc, 24, v%d" % r)
    e("v_mul_u32_u24 v%d, 11, v%d" % (T, r))
    e("v_lshrrev_b32 v%d, 5, v%d" % (T, T))
    e("v_add_lshl_u32 v%d, v%d, v%d, 2" % (T, T, r))
    e("v_lshl_add_u32 v%d, v%d, 7, v%d" % (T, b, T))
    e("s_and_b64 exec, exec, vcc")
    e("ds_write_b32 v%d, v%d" % (T, rec))
    e("s_mov_b64 exec, -1")
put_rec(T + 9, T + 7, T + 5)
e("s_branch L_rank2")
lab("L_rank1")
make_rec(T + 10, T + 11, T + 4, T, T + 1)
e("v_lshl_or_b32 v%d, v0, 20, v%d" % (T + 4, T + 4))
e("s_cmp_lg_u32 s%d, 2" % sW)
e("s_cbranch_scc1 L_rank1b")
e("ds_write_b32 v%d, v%d" % (T + 14, T + 15))
lab("L_rank1b")
e("s_waitcnt lgkmcnt(0)")
lab("L_rank2")
put_rec(T + 8, T + 6, T + 4)
e("s_waitcnt lgkmcnt(0)")
stamp("rank", (3,))
e("s_barrier")
stamp("barA", (3,))
e("ds_read_b32 v%d, v%d" % (T + 9, T + 14))
e("ds_read_b128 %s, v%d" % (vr(T, 4), T + 19))
e("ds_read_b32 v%d, v%d offset:%d" % (T + 13, T + 22, L_CNT))
e("ds_read_b128 %s, v%d offset:32" % (vr(T + 4, 4), T + 19))
e("v_add_u32 v%d, 0x200000, v%d" % (T + 15, T + 23))
e("s_waitcnt lgkmcnt(3)")
e("v_readfirstlane_b32 s%d, v%d" % (sE1, T + 9))
e("s_add_u32 s%d, s%d, 1" % (sE1, sE1))
e("s_mul_i32 s%d, s%d, 0x9e3779b1" % (sT, sE1))
e("s_waitcnt lgkmcnt(2)")
e("v_mov_b32 v%d, s%d" % (T + 3, sT))
e("global_store_dwordx4 v%d, %s, %s sc1" % (T + 23, vr(T, 4), sr(sWS)))
e("s_waitcnt lgkmcnt(0)")
e("v_cmp_le_u32 vcc, 6, v%d" % (T + 13))
e("v_mov_b32 v%d, s%d" % (T + 7, sT))
e("s_mov_b32 s%d, 0" % sLVL)
e("s_and_b64 exec, vcc, -1")
e("s_cbranch_execz L_pub1")
e("global_store_dwordx4 v%d, %s, %s sc1" % (T + 15, vr(T + 4, 4), sr(sWS)))
e("v_cmp_le_u32 vcc, 12, v%d" % (T + 13))
e("s_and_b64 exec, exec, vcc")
e("s_cbranch_execnz L_pub_more")
e("s_mov_b32 s%d, 1" % sLVL)
lab("L_pub1")
e("s_mov_b64 exec, -1")
stamp("pub", (1,2,3,4))
e("v_and_b32 v%d, 31, v%d" % (T, vL))
e("v_lshrrev_b32 v%d, 5, v%d" % (T + 1, vL))
e("v_bfe_u32 v%d, v%d, 2, 2" % (T + 2, vL))
e("v_xor_b32 v%d, v%d, v%d" % (T + 3, T + 1, T + 2))
e("v_lshlrev_b32 v%d, 4, v%d" % (T + 3, T + 3))
e("v_lshl_add_u32 v%d, v%d, 6, v%d" % (vAS0, T, T + 3))
e("v_xor_b32 v%d, 32, v%d" % (vAS1, vAS0))
e("v_lshlrev_b32 v%d, 1, v%d" % (T + 3, T + 1))
e("v_xor_b32 v%d, v%d, v%d" % (T + 3, T + 3, T + 2))
e("v_lshlrev_b32 v%d, 4, v%d" % (T + 3, T + 3))
e("v_lshl_add_u32 v%d, v%d, 6, v%d" % (vTW, T, T + 3))
e("v_lshl_add_u32 v%d, v%d, 3, v%d" % (T + 3, T + 1, T + 2))
e("s_lshl_b32 s%d, s%d, 13" % (sTMP, sCB))
e("v_lshl_add_u32 v%d, v%d, 6, s%d" % (T + 3, T + 3, sTMP))
e("v_bfe_u32 v%d, v%d, 4, 1" % (T + 4, vL))
e("v_and_b32 v%d, 3, v%d" % (T + 5, vL))
e("v_lshl_add_u32 v%d, v%d, 2, v%d" % (T + 6, T + 4, T + 5))
e("v_lshl_add_u32 v%d, v%d, 3, v%d" % (vWN, T + 6, T + 3))
e("v_and_b32 v%d, 1, v%d" % (T + 6, vL))
e("v_bfe_u32 v%d, v%d, 1, 1" % (T + 7, vL))
e("v_lshl_add_u32 v%d, v%d, 1, v%d" % (T + 9, T + 4, T + 7))
e("v_lshl_add_u32 v%d, v%d, 2, v%d" % (T + 14, T + 6, T + 9))
e("v_lshl_add_u32 v%d, v%d, 3, v%d" % (vWP, T + 14, T + 3))
e("v_mov_b32 v%d, %d" % (vCB, CS))
e("s_mul_i32 s%d, s%d, %d" % (sTMP, sSB, 4 * CS))
e("v_lshl_add_u32 v%d, v%d, 4, s%d" % (T + 3, T, sTMP))
e("v_mad_u32_u24 v%d, v%d, v%d, v%d" % (vEB, T + 1, vCB, T + 3))
e("v_lshl_add_u32 v%d, v%d, 2, v%d" % (T + 3, T + 1, T + 2))
e("v_lshl_add_u32 v%d, v%d, 4, s%d" % (T + 3, T + 3, sTMP))
e("v_lshl_add_u32 v%d, v%d, 3, v%d" % (T + 3, T + 6, T + 3))
e("v_mad_u32_u24 v%d, v%d, v%d, v%d" % (vSL, T + 9, vCB, T + 3))
srd(sPD, sWS, 256, N, W_P)
e("s_mov_b32 s%d, 0x%x" % (sC1, NLOG2E)); e("s_mov_b32 s%d, 0x%x" % (sC1 + 1, NLOG2E))
e("s_cmp_eq_u32 s%d, 2" % sLVL)
e("s_cbranch_scc1 L_pw4")
e("s_cmp_eq_u32 s%d, 1" % sLVL)
e("s_cbranch_scc1 L_pw2")
if OPT["stamps"] == 3: e("s_waitcnt vmcnt(5)")
else: e("s_waitcnt vmcnt(1)")
lab("L_pw2")
if OPT["stamps"] == 3:
    e("s_waitcnt vmcnt(6)")
    stamp("xland", (3,))
    e("s_cbranch_scc1 L_pw3")
    e("s_waitcnt vmcnt(1)")
    lab("L_pw3")
e("s_waitcnt vmcnt(2)")
lab("L_pw4")
e("s_waitcnt vmcnt(4)")
stamp("w1land", (3,))
e("s_barrier")
stamp("barB", (1,2,3))
p_compute(None, True)
stamp("pst", (2,))
w_dma(sWU, 128, L_A)
stamp("wu2iss", (2,4))
if OPT["stamps"] == 4: e("s_waitcnt vmcnt(0)"); stamp("wu2land", (4,))
reset_lists("a")
stamp("reset", (2,4))
w_dma(sWM, 128, L_B)
w_dma(sWU, 0, L_C)
stamp("wiss", (2,4))
srd(sED, sEA, 0, E * 8)
e("v_mov_b32 v%d, 0x3f80" % vBF1)
e("s_mov_b32 s%d, 0x%x" % (sC2, NLN2)); e("s_mov_b32 s%d, 0x%x" % (sC2 + 1, NLN2))
e("s_mov_b32 s%d, 0xaaaaaaaa" % sODD); e("s_mov_b32 s%d, 0xaaaaaaaa" % (sODD + 1))
e("s_lshl_b32 s%d, s%d, 11" % (sRB, sW))
e("s_add_u32 s%d, s%d, 0x%x" % (sRB, sRB, L_RING))
e("v_add_u32 v%d, s%d, v%d" % (vP0, sRB, vAS0))
e("v_add_u32 v%d, s%d, v%d" % (vP1, sRB, vAS1))
for j in range(6): e("v_mov_b32 v%d, 0" % (SA + j)); e("v_mov_b32 v%d, 0" % (OA + j))
RA, RB_, RN, RE, EV = PA, PA + 4, OA, SA, EE
vSWP, vCHB, vFLG = T + 16, T + 17, T + 18
e("s_lshl_b32 s%d, s2, 13" % sTMP)
e("s_add_u32 s%d, s%d, 0x%x" % (sTMP, sTMP, W_SLOT))
e("v_lshl_add_u32 v%d, v0, 4, s%d" % (vSWP, sTMP))
e("v_lshrrev_b32 v%d, 1, v0" % vCHB)
e("s_and_b32 s%d, s2, 7" % sTMP)
e("s_lshl_b32 s%d, s%d, 13" % (sTMP, sTMP))
e("s_add_u32 s%d, s%d, 0x%x" % (sTMP, sTMP, W_FLAG))
e("v_lshl_add_u32 v%d, v%d, 5, s%d" % (vFLG, vCHB, sTMP))
e("v_mul_u32_u24 v%d, %d, v%d" % (vCHB, CH, vCHB))
e("s_mov_b32 s%d, 0" % sLVL)
e("s_mov_b32 s%d, 0" % sSPIN)
e("s_mov_b32 s%d, 0" % sMODE)
e("s_mov_b64 %s, -1" % sr(sNA))
e("v_add_u32 v%d, 0x200000, v%d" % (T + 19, vSWP))
e("s_lshl_b32 s%d, s2, 5" % sTMP)
e("s_add_u32 s%d, s%d, 0x%x" % (sTMP, sTMP, W_FLAG))
e("v_lshl_add_u32 v%d, v%d, 13, s%d" % (T + 2, vL, sTMP))
e("v_mov_b32 v%d, s%d" % (T, sT))
e("v_not_b32 v%d, v%d" % (T + 1, T))
e("v_lshlrev_b32 v%d, 4, v%d" % (T + 3, vL))
e("v_add_u32 v%d, 0x10000, v%d" % (T + 3, T + 3))
e("s_mov_b32 m0, %d" % L_CNT)
e("s_waitcnt vmcnt(8) lgkmcnt(0)")
stamp("pack", (2,))
e("s_barrier")
e("s_cmp_lg_u32 s%d, 0" % sW)
e("s_cbranch_scc1 L_noflag")
e("s_mov_b64 exec, 0xff")
e("global_store_dwordx2 v%d, %s, %s sc1" % (T + 2, vr(T, 2), sr(sWS)))
e("s_mov_b64 exec, -1")
e("global_load_lds_dwordx4 v%d, %s" % (T + 3, sr(sWM)))
lab("L_noflag")
stamp("flag", (1,2,4))
e("global_load_dwordx4 %s, v%d, %s sc1" % (vr(RA, 4), vSWP, sr(sWS)))
e("global_load_dwordx4 %s, v%d, %s sc1" % (vr(RB_, 4), T + 19, sr(sWS)))
w_frag(W1F, vWP, L_A)
e("v_and_b32 v%d, 31, v%d" % (T + 10, vL))
e("v_lshrrev_b32 v%d, 5, v%d" % (T + 11, vL))
e("v_lshlrev_b32 v%d, 3, v%d" % (T + 11, T + 11))
e("v_sub_u32 v%d, v%d, v%d" % (T + 10, T + 10, T + 11))
e("v_and_b32 v%d, 1, v%d" % (T + 11, vL))
e("v_lshlrev_b32 v%d, 4, v%d" % (T + 11, T + 11))
e("v_lshlrev_b32 v%d, v%d, v%d" % (T + 11, T + 11, vBF1))
e("v_ashrrev_i32 v%d, 1, v%d" % (T + 10, T + 10))
for j in range(8):
    e("v_cmp_eq_u32 vcc, %d, v%d" % ((j & 3) + (j >> 2) * 8, T + 10))
    nop(2)
    e("v_cndmask_b32_e64 v%d, 0, v%d, vcc" % (ID + j, T + 11))
if OPT["force_mode"] == 2:
    e("s_branch L_timeout")
e("s_branch L_pollC")
lab("L_level")
e("s_mov_b64 %s, %s" % (sr(sPA), sr(sNA))); e("s_mov_b64 %s, %s" % (sr(sPB), sr(sNA)))
e("v_add_u32 v%d, 0x200000, v%d" % (T + 19, vSWP))
lab("L_poll")
e("s_mov_b64 exec, %s" % sr(sPA))
e("s_cbranch_execz L_pollB")
e("global_load_dwordx4 %s, v%d, %s sc1" % (vr(RA, 4), vSWP, sr(sWS)))
lab("L_pollB")
e("s_mov_b64 exec, %s" % sr(sPB))
e("s_cbranch_execz L_pollC")
e("global_load_dwordx4 %s, v%d, %s sc1" % (vr(RB_, 4), T + 19, sr(sWS)))
lab("L_pollC")
e("s_mov_b64 exec, %s" % sr(sNA))
e("s_add_u32 s%d, s%d, 1" % (sSPIN, sSPIN))
e("s_waitcnt vmcnt(0)")
e("v_or3_b32 v%d, v%d, v%d, v%d" % (T, RA, RA + 1, RA + 2))
e("v_or3_b32 v%d, v%d, v%d, v%d" % (T + 1, RB_, RB_ + 1, RB_ + 2))
e("v_cmp_eq_u32 %s, s%d, v%d" % (sr(sVA), sT, RA + 3))
e("v_cmp_eq_u32 %s, s%d, v%d" % (sr(sVB), sT, RB_ + 3))
e("v_cmp_gt_u32 %s, 2.0, v%d" % (sr(sPA), T))
e("v_cmp_gt_u32 %s, 2.0, v%d" % (sr(sPB), T + 1))
e("v_cmp_ne_u32 vcc, 0x%x, v%d" % (SENT, RA + 2))
e("s_and_b64 %s, %s, %s" % (sr(sVA), sr(sVA), sr(sPA)))
e("s_and_b64 %s, %s, %s" % (sr(sVB), sr(sVB), sr(sPB)))
e("s_and_b64 %s, vcc, %s" % (sr(sNB), sr(sVA)))
e("s_and_b64 %s, %s, %s" % (sr(sNB), sr(sNB), sr(sODD)))
e("s_lshr_b64 %s, %s, 1" % (sr(sQ), sr(sNB)))
e("s_or_b64 %s, %s, %s" % (sr(sNB), sr(sNB), sr(sQ)))
e("s_andn2_b64 %s, %s, %s" % (sr(sPA), sr(sNA), sr(sVA)))
e("s_and_b64 %s, %s, %s" % (sr(sQ), sr(sPA), sr(sODD)))
e("s_or_b64 %s, %s, %s" % (sr(sPB), sr(sNB), sr(sQ)))
e("s_lshr_b64 %s, %s, 1" % (sr(sQ), sr(sQ)))
e("s_or_b64 %s, %s, %s" % (sr(sPB), sr(sPB), sr(sQ)))
e("s_andn2_b64 %s, %s, %s" % (sr(sPB), sr(sPB), sr(sVB)))
e("s_or_b64 %s, %s, %s" % (sr(sQ), sr(sPA), sr(sPB)))
e("s_cbranch_scc0 L_got")
e("s_cmp_lt_u32 s%d, %d" % (sSPIN, OPT["spin"]))
e("s_cbranch_scc1 L_poll")
e("s_branch L_timeout")
lab("L_got")
e("s_mov_b64 exec, -1")
e("global_load_dwordx2 %s, v%d, %s sc1" % (vr(T + 22, 2), vFLG, sr(sWS)))
stamp("got", (1,4))
recs = [RA, RA + 1, RA + 2, RB_, RB_ + 1, RB_ + 2]
for k, x in enumerate(recs):
    e("v_cmp_ne_u32 vcc, 0x%x, v%d" % (SENT, x))
    e("s_and_b64 %s, vcc, %s" % (sr(sM + 2 * k), sr(sNA if k < 3 else sNB)))
for k, x in enumerate(recs):
    e("s_mov_b64 exec, %s" % sr(sM + 2 * k))
    if k in (2, 3): e("s_cbranch_execz L_ra%d" % (2 if k < 3 else 5))
    rec_a(x, RN + k, None, None)
    e("v_lshrrev_b32 v%d, 20, v%d" % (RE + k, x))
    e("v_add_lshl_u32 v%d, v%d, v%d, 3" % (RE + k, RE + k, vCHB))
    if k in (2, 5): lab("L_ra%d" % k)
e("s_waitcnt lgkmcnt(0)")
e("s_and_b64 %s, %s, %s" % (sr(sNA), sr(sM + 10), sr(sODD)))
for k, x in enumerate(recs):
    e("s_mov_b64 exec, %s" % sr(sM + 2 * k))
    e("s_cbranch_execz L_rb%d" % (2 if k < 3 else 5))
    e("v_cmp_gt_u32 vcc, %d, v%d" % (CAP, RN + k))
    e("s_and_b64 exec, exec, vcc")
    e("s_mov_b64 %s, exec" % sr(sM + 2 * k))
    rec_b(x, RN + k, T, T + 1)
    if k in (2, 5): lab("L_rb%d" % k)
e("s_mov_b64 exec, -1")
e("s_cmp_lg_u64 %s, 0" % sr(sNA))
e("s_cbranch_scc1 L_nextlevel")
lab("L_flags")
e("s_waitcnt vmcnt(0)")
e("v_not_b32 v%d, v%d" % (T + 23, T + 23))
e("v_cmp_ne_u32 vcc, s%d, v%d" % (sT, T + 22))
e("v_cmp_ne_u32 %s, s%d, v%d" % (sr(sQ), sT, T + 23))
e("s_or_b64 exec, vcc, %s" % sr(sQ))
e("s_cbranch_execz L_flagsok")
e("global_load_dwordx2 %s, v%d, %s sc1" % (vr(T + 22, 2), vFLG, sr(sWS)))
e("s_add_u32 s%d, s%d, 1" % (sSPIN, sSPIN))
e("s_cmp_lt_u32 s%d, %d" % (sSPIN, OPT["spin"]))
e("s_cbranch_scc1 L_flags")
lab("L_timeout")
e("s_mov_b32 s%d, 2" % sMODE)
lab("L_setmode")
e("s_mov_b64 exec, -1")
e("s_waitcnt vmcnt(0)")
e("v_mov_b32 v%d, %d" % (T, L_MODE))
e("v_mov_b32 v%d, s%d" % (T + 1, sMODE))
e("ds_max_u32 v%d, v%d" % (T, T + 1))
e("s_branch L_barE")
lab("L_flagsok")
e("s_mov_b64 exec, -1")
e("s_cmp_lg_u32 s%d, 0" % sMODE)
e("s_cbranch_scc1 L_setmode")
def e_load(tag):
    for k in range(6):
        e("s_mov_b64 exec, %s" % sr(sM + 2 * k))
        e("s_cbranch_execz L_el%s%d" % (tag, k))
        e("buffer_load_dwordx2 %s, v%d, %s, 0 offen" % (vr(EV + 2 * k, 2), RE + k, sr(sED, 4)))
        lab("L_el%s%d" % (tag, k))
    e("s_mov_b64 exec, -1")
def e_write(tag):
    for k in range(6):
        e("s_mov_b64 exec, %s" % sr(sM + 2 * k))
        e("ds_write_b64 v%d, %s offset:%d" % (RN + k, vr(EV + 2 * k, 2), 3 * CS))
    e("s_mov_b64 exec, -1")
e_load("a")
lab("L_barE")
e("s_waitcnt lgkmcnt(0)")
e("s_barrier")
stamp("barE", (1,4))
e("v_mov_b32 v%d, %d" % (T, L_CNT2))
e("ds_read_b96 %s, v%d" % (vr(T + 4, 3), T))
e("s_waitcnt lgkmcnt(0)")
e("v_max_u32 v%d, v%d, v%d" % (T + 7, T + 4, T + 5))
e("v_readfirstlane_b32 s%d, v%d" % (sMODE, T + 6))
e("v_readfirstlane_b32 s%d, v%d" % (sTMP, T + 7))
if OPT["force_mode"] == 1:
    e("s_mov_b32 s%d, 1" % sMODE)
e("s_cmp_gt_u32 s%d, %d" % (sTMP, CAP))
e("s_cselect_b32 s%d, 1, 0" % sTMP)
e("s_max_u32 s%d, s%d, s%d" % (sMODE, sMODE, sTMP))
e("s_cmp_lg_u32 s%d, 0" % sMODE)
e("s_cbranch_scc1 L_slow")
lab("L_flush")
e("v_readfirstlane_b32 s%d, v%d" % (sNT, T + 4))
e("v_readfirstlane_b32 s%d, v%d" % (sTMP, T + 5))
e("s_cmp_lg_u32 s%d, 0" % sSB)
e("s_cselect_b32 s%d, s%d, s%d" % (sNT, sTMP, sNT))
e("s_min_u32 s%d, s%d, %d" % (sNT, sNT, CAP))
e("s_add_u32 s%d, s%d, 31" % (sNT, sNT))
e("s_lshr_b32 s%d, s%d, 5" % (sNT, sNT))
e("s_mul_i32 s%d, s%d, %d" % (sTMP, sSB, LSTR))
e("s_add_u32 s%d, s%d, %d" % (sTMP, sTMP, L_LIST))
e("v_and_b32 v%d, 60, v%d" % (vLI, vL))
e("v_add_u32 v%d, s%d, v%d" % (vLI, sTMP, vLI))
for t in range(R):
    e("ds_read2_b32 %s, v%d offset0:%d offset1:%d" % (vr(T + 2 * t, 2), vLI, 32 * t, 32 * t + 16))
e("v_mov_b32 v%d, v%d" % (vOH, vEB))
e("v_mov_b32 v%d, v%d" % (vS, vSL))
def dma(slot):
    setm0(sRB, slot * SLOT); nop(1)
    e(("buffer_load_dwordx4 %s, %s, 0 idxen offen " + ("sc1 " if OPT["gsc1"] else "") + "lds") % (vr(vI0, 2), sr(sPD, 4)))
    setm0(sRB, slot * SLOT + 1024); nop(1)
    e(("buffer_load_dwordx4 %s, %s, 0 idxen offen " + ("sc1 " if OPT["gsc1"] else "") + "lds") % (vr(vI1, 2), sr(sPD, 4)))
for t in range(R):
    if t == OPT["t01"]:
        e("s_cmp_lg_u32 s%d, 0" % sMODE)
        e("s_cbranch_scc1 L_noew")
        qu_compute()
        stamp("U", (1,))
        e("s_waitcnt vmcnt(%d)" % (2 * t))
        e_write("a")
        e("s_waitcnt lgkmcnt(0)")
        e("s_barrier")
        lab("L_noew")
        stamp("barF", (1,))
    e("s_waitcnt lgkmcnt(%d)" % (R - 1 - t))
    e("v_mov_b32 v%d, v%d" % (vI0, T + 2 * t)); e("v_mov_b32 v%d, v%d" % (vI1, T + 2 * t + 1))
    dma(t)
e("s_cmp_eq_u32 s%d, 0" % sNT)
e("s_cbranch_scc1 L_flush_done")
def rd_idx(t):
    e("ds_read_b32 v%d, v%d offset:%d" % (vI0, vLI, 128 * t))
    e("ds_read_b32 v%d, v%d offset:%d" % (vI1, vLI, 128 * t + 64))
def rd_oh(t):
    e("ds_read_b128 %s, v%d offset:%d" % (vr(OA, 4), vOH, 512 * t))
    e("ds_read_b128 %s, v%d offset:%d" % (vr(OA + 4, 4), vOH, 512 * t + 2 * CS))
def rd_p(slot):
    e("ds_read_b128 %s, v%d offset:%d" % (vr(PA, 4), vP0, SLOT * slot))
    e("ds_read_b128 %s, v%d offset:%d" % (vr(PA + 4, 4), vP1, SLOT * slot))
def rd_s(t):
    for q in range(4): e("ds_read_b64_tr_b16 %s, v%d offset:%d" % (vr(SA + 2 * q, 2), vS, 512 * t + 128 * q))
rd_oh(0); rd_idx(R)
for j in range(8): e("v_mov_b32 v%d, 0" % (MSG + j)); e("v_mov_b32 v%d, 0" % (SA + j))
e("s_waitcnt lgkmcnt(2)")
mfma(Y0, OA, QW, "0"); mfma(Y0, OA + 4, QW + 4, Y0)
rd_oh(1)
e("s_waitcnt vmcnt(%d)" % (2 * (R - 1)))
rd_p(0)
e("s_waitcnt lgkmcnt(0)")
mfma(Y0, PA, ID, Y0); mfma(Y0, PA + 4, ID + 4, Y0)
dma(0)
rd_idx(R + 1)
e("s_waitcnt vmcnt(%d)" % (2 * (R - 1)))
rd_p(1)
e("s_mov_b32 s%d, 0" % sIT)
stamp("loop", (1,))
nop(4)
lab("L_loop")
for u in range(R):
    Yc, Yn = (Y0, Y1) if u % 2 == 0 else (Y1, Y0)
    ex = lambda a, b: [e("v_exp_f32 v%d, v%d" % (EE + j, Yc + j)) for j in range(a, b)]
    rc = lambda a, b: [e("v_rcp_f32 v%d, v%d" % (EE + j, EE + j)) for j in range(a, b)]
    e("s_waitcnt lgkmcnt(0)")
    mfma(Yn, PA, ID, "0")
    setm0(sRB, ((u + 1) % R) * SLOT)
    ex(0, 2)
    e(("buffer_load_dwordx4 %s, %s, 0 idxen offen " + ("sc1 " if OPT["gsc1"] else "") + "lds") % (vr(vI0, 2), sr(sPD, 4)))
    setm0(sRB, ((u + 1) % R) * SLOT + 1024)
    ex(2, 4)
    mfma(Yn, PA + 4, ID + 4, Yn)
    e(("buffer_load_dwordx4 %s, %s, 0 idxen offen " + ("sc1 " if OPT["gsc1"] else "") + "lds") % (vr(vI1, 2), sr(sPD, 4)))
    ex(4, 8)
    mfma(Yn, OA, QW, Yn)
    ex(8, 16)
    for j in range(8): e("v_pk_add_f32 %s, %s, 1.0 op_sel_hi:[1,0]" % (vr(EE + 2 * j, 2), vr(EE + 2 * j, 2)))
    mfma(Yn, OA + 4, QW + 4, Yn)
    rc(0, 4)
    mfma(AGG, MSG, SA, AGG)
    rc(4, 8)
    mfma(AGG, MSG + 4, SA + 4, AGG)
    rd_idx(u + 2 + R)
    rc(8, 10)
    rd_oh(u + 2)
    rc(10, 12)
    rd_s(u)
    rc(12, 14)
    e("s_waitcnt vmcnt(%d)" % (2 * (R - 1)))
    rd_p((u + 2) % R)
    rc(14, 16)
    e("s_add_u32 s%d, s%d, 1" % (sIT, sIT))
    for j in range(8): e("v_pk_mul_f32 %s, %s, %s" % (vr(EE + 2 * j, 2), vr(EE + 2 * j, 2), vr(Yc + 2 * j, 2)))
    e("s_cmp_ge_u32 s%d, s%d" % (sIT, sNT))
    for j in range(8): e("v_cvt_pk_bf16_f32 v%d, v%d, v%d" % (MSG + j, EE + 2 * j, EE + 2 * j + 1))
    if u < R - 1:
        e("s_cbranch_scc1 L_loop_end")
    else:
        e("v_add_u32 v%d, %d, v%d" % (vOH, 512 * R, vOH))
        e("v_add_u32 v%d, %d, v%d" % (vS, 512 * R, vS))
        e("v_add_u32 v%d, %d, v%d" % (vLI, 128 * R, vLI))
        e("s_cbranch_scc0 L_loop")
lab("L_loop_end")
e("s_waitcnt lgkmcnt(0)")
nop(1)
mfma(AGG, MSG, SA, AGG)
mfma(AGG, MSG + 4, SA + 4, AGG)
lab("L_flush_done")
e("s_cmp_lg_u32 s%d, 0" % sMODE)
e("s_cbranch_scc1 L_slow_ret")
lab("L_epi")
stamp("epi", (1,))
e("v_and_b32 v%d, 0x13, v%d" % (T, vL))
e("v_bfe_u32 v%d, v%d, 2, 1" % (T + 1, vL))
e("v_lshl_or_b32 v%d, v%d, 3, v%d" % (T, T + 1, T))
e("v_bfe_u32 v%d, v%d, 3, 1" % (T + 1, vL))
e("v_lshl_or_b32 v%d, v%d, 2, v%d" % (T, T + 1, T))
e("v_bfe_u32 v%d, v%d, 2, 2" % (T + 1, T))
e("v_lshlrev_b32 v%d, 4, v%d" % (T + 1, T + 1))
e("v_lshl_add_u32 v%d, v%d, 6, v%d" % (T, T, T + 1))
e("v_lshrrev_b32 v%d, 5, v%d" % (T + 1, vL))
e("v_lshl_add_u32 v%d, v%d, 3, v%d" % (T, T + 1, T))
e("v_add_u32 v%d, s%d, v%d" % (T, sRB, T))
for i in range(1, 4): e("v_xor_b32 v%d, %d, v%d" % (T + i, 16 * i, T))
for j in range(8): e("v_pk_mul_f32 %s, %s, %s" % (vr(AGG + 2 * j, 2), vr(AGG + 2 * j, 2), sr(sC2)))
for j in range(8): e("v_cvt_pk_bf16_f32 v%d, v%d, v%d" % (MSG + j, AGG + 2 * j, AGG + 2 * j + 1))
e("s_waitcnt vmcnt(0)")
for i in range(4): e("ds_write_b64 v%d, %s" % (T + i, vr(MSG + 2 * i, 2)))
e("s_waitcnt lgkmcnt(0)")
e("s_barrier")
tile_frag(XF, L_RING, 2048)
for j in range(8):
    e("s_waitcnt lgkmcnt(%d)" % (7 - j))
    mfma(U, W1F + 4 * j, XF + 4 * j, U)
node_idx(2)
tr_addr(sRB, SLOT)
srd(sXD, sOUT, 256, N)
for j in range(8): e("v_pk_mul_f32 %s, %s, %s" % (vr(EE + 2 * j, 2), vr(U + 2 * j, 2), sr(sC1)))
for j in range(16): e("v_exp_f32 v%d, v%d" % (EE + j, EE + j))
for j in range(8): e("v_pk_add_f32 %s, %s, 1.0 op_sel_hi:[1,0]" % (vr(EE + 2 * j, 2), vr(EE + 2 * j, 2)))
for j in range(16): e("v_rcp_f32 v%d, v%d" % (EE + j, EE + j))
for j in range(8): e("v_pk_mul_f32 %s, %s, %s" % (vr(EE + 2 * j, 2), vr(EE + 2 * j, 2), vr(U + 2 * j, 2)))
for j in range(8): e("v_cvt_pk_bf16_f32 v%d, v%d, v%d" % (MSG + j, EE + 2 * j, EE + 2 * j + 1))
tr_store(MSG, sXD, ["", " sc1", " nt", " sc0 sc1", " sc1 nt"][OPT["of"]])
e("s_or_b32 s%d, s2, s%d" % (sTMP, sW))
e("s_cbranch_scc1 L_noep")
e("v_mov_b32 v%d, 0" % (T + 1))
e("v_mov_b32 v%d, s%d" % (T + 2, sE1))
e("s_mov_b64 exec, 1")
e("global_store_dword v%d, v%d, %s sc1" % (T + 1, T + 2, sr(sWS)))
e("s_mov_b64 exec, -1")
lab("L_noep")
if OPT["stamps"]:
    e("s_mov_b64 exec, -1")
    e("s_waitcnt vmcnt(0)")
    stamp("end", (1,2,3,4))
    e("v_mov_b32 v%d, s%d" % (vST + 14, sSPIN)); e("v_mov_b32 v%d, s%d" % (vST + 15, sNT))
    e("s_lshl_b32 s%d, s2, 3" % sTMP); e("s_add_u32 s%d, s%d, s%d" % (sTMP, sTMP, sW))
    e("s_lshl_b32 s%d, s%d, 6" % (sTMP, sTMP)); e("s_add_u32 s%d, s%d, 0x%x" % (sTMP, sTMP, W_STAMP))
    e("v_mov_b32 v%d, s%d" % (T, sTMP))
    e("s_mov_b64 exec, 1")
    if OPT["enc"] >= 0:
        e("v_not_b32 v%d, v%d" % (vST + 15, vST))
        e("v_mov_b32 v%d, 0" % T)
        e("s_cmp_lg_u32 s%d, 0" % sW)
        e("s_cbranch_scc1 L_enc0")
        e("global_atomic_umax v%d, v%d, %s sc1" % (T, vST + 15, sr(sDBG)))
        lab("L_enc0")
        e("v_readfirstlane_b32 s%d, v%d" % (sQ, vST))
        e("s_add_u32 s%d, s%d, 5000" % (sQ, sQ))
        lab("L_enc1")
        e("s_sleep 8")
        e("s_memrealtime %s" % sr(sST)); e("s_waitcnt lgkmcnt(0)")
        e("s_sub_u32 s%d, s%d, s%d" % (sTMP, sST, sQ))
        e("s_cmp_lt_i32 s%d, 0" % sTMP)
        e("s_cbranch_scc1 L_enc1")
        e("global_load_dword v%d, v%d, %s sc1" % (T + 1, T, sr(sDBG)))
        e("s_waitcnt vmcnt(0)")
        e("v_readfirstlane_b32 s%d, v%d" % (sQ, T + 1))
        e("s_not_b32 s%d, s%d" % (sQ, sQ))
        if OPT["enc"] < 16:
            e("v_readfirstlane_b32 s%d, v%d" % (sQ + 1, vST + OPT["enc"]))
            e("s_sub_u32 s%d, s%d, s%d" % (sQ + 1, sQ + 1, sQ))
            e("s_min_u32 s%d, s%d, 10000" % (sQ + 1, sQ + 1))
            e("s_mul_i32 s%d, s%d, 10" % (sQ + 1, sQ + 1))
            e("s_add_u32 s%d, s%d, s%d" % (sQ, sQ, sQ + 1))
        e("s_add_u32 s%d, s%d, 10000" % (sQ, sQ))
        lab("L_enc2")
        e("s_memrealtime %s" % sr(sST)); e("s_waitcnt lgkmcnt(0)")
        e("s_sub_u32 s%d, s%d, s%d" % (sTMP, sST, sQ))
        e("s_cmp_lt_i32 s%d, 0" % sTMP)
        e("s_cbranch_scc1 L_enc2")
    elif OPT["dbg"]:
        e("v_not_b32 v%d, v%d" % (vST + 15, vST))
        e("v_mov_b32 v%d, 0" % T)
        for j in range(16): e("global_atomic_umax v%d, v%d, %s offset:%d sc1" % (T, vST + j, sr(sDBG), 4 * j))
    else:
        for j in range(4): e("global_store_dwordx4 v%d, %s, %s offset:%d" % (T, vr(vST + 4 * j, 4), sr(sWS), 16 * j))
lab("L_end")
e("s_endpgm")

lab("L_pub_more")
e("ds_read_b128 %s, v%d offset:64" % (vr(MSG, 4), T + 19))
e("ds_read_b128 %s, v%d offset:96" % (vr(MSG + 4, 4), T + 19))
e("v_add_u32 v%d, 0x400000, v%d" % (T + 10, T + 23))
e("v_add_u32 v%d, 0x600000, v%d" % (T + 11, T + 23))
e("s_waitcnt lgkmcnt(0)")
e("v_mov_b32 v%d, s%d" % (MSG + 3, sT))
e("v_mov_b32 v%d, s%d" % (MSG + 7, sT))
e("global_store_dwordx4 v%d, %s, %s sc1" % (T + 10, vr(MSG, 4), sr(sWS)))
e("global_store_dwordx4 v%d, %s, %s sc1" % (T + 11, vr(MSG + 4, 4), sr(sWS)))
e("s_mov_b32 s%d, 2" % sLVL)
e("s_branch L_pub1")

lab("L_nextlevel")
e("s_cmp_lg_u32 s%d, 0" % sLVL)
e("s_cbranch_scc0 L_nl1")
e("s_mov_b32 s%d, 1" % sMODE)
e("s_branch L_flags")
lab("L_nl1")
e_load("b")
e("s_waitcnt vmcnt(0)")
e_write("b")
e("s_lshr_b64 %s, %s, 1" % (sr(sQ), sr(sNA)))
e("s_or_b64 %s, %s, %s" % (sr(sNA), sr(sNA), sr(sQ)))
e("s_mov_b32 s%d, 1" % sLVL)
e("v_add_u32 v%d, 0x400000, v%d" % (vSWP, vSWP))
e("s_waitcnt lgkmcnt(0)")
e("s_branch L_level")

lab("L_slow")
e("s_waitcnt vmcnt(0)")
qu_compute()
e("s_barrier")
srd(sDD, sDST, 0, E * 4)
srd(sSD, sSRC, 0, E * 4)
e("s_cmp_lg_u32 s%d, 2" % sMODE)
e("s_cbranch_scc1 L_scan")
for j in range(4): e("v_mov_b32 v%d, -1" % (T + j))
e("v_lshrrev_b32 v%d, 1, v0" % (T + 10))
e("v_and_b32 v%d, 1, v0" % (T + 11))
e("v_lshlrev_b32 v%d, 4, v%d" % (T + 11, T + 11))
e("s_lshl_b32 s%d, s2, 5" % sTMP)
e("s_add_u32 s%d, s%d, 0x%x" % (sTMP, sTMP, W_SLOT))
e("v_lshl_add_u32 v%d, v%d, 13, v%d" % (T + 14, T + 10, T + 11))
e("v_add_u32 v%d, s%d, v%d" % (T + 14, sTMP, T + 14))
for p in range(4):
    e("global_store_dwordx4 v%d, %s, %s sc1" % (T + 14, vr(T, 4), sr(sWS)))
    e("v_add_u32 v%d, 0x200000, v%d" % (T + 14, T + 14))
e("s_lshl_b32 s%d, s2, 5" % sTMP)
e("s_add_u32 s%d, s%d, 0x%x" % (sTMP, sTMP, W_FLAG))
e("v_and_b32 v%d, 7, v0" % (T + 10))
e("v_lshl_add_u32 v%d, v%d, 13, s%d" % (T + 10, T + 10, sTMP))
e("global_store_dwordx2 v%d, %s, %s sc1" % (T + 10, vr(T, 2), sr(sWS)))
w_dma(sWM, 0, L_C)
e("s_waitcnt vmcnt(0)")
e("s_barrier")
w_frag(WT, vWP, L_C)
e("s_mov_b32 s%d, 0" % sCP)
lab("L_pall")
e("s_barrier")
node_idx(sCP)
x_dma()
e("s_waitcnt vmcnt(0)")
e("s_barrier")
tile_frag(XF, L_X, 2048)
e("s_waitcnt lgkmcnt(0)")
p_compute(WT)
e("s_add_u32 s%d, s%d, 1" % (sCP, sCP))
e("s_cmp_lt_u32 s%d, 256" % sCP)
e("s_cbranch_scc1 L_pall")
e("s_waitcnt vmcnt(0)")
lab("L_scan")
e("s_mov_b32 s%d, 0" % sSTEP)
e("s_mov_b64 %s, 0" % sr(sPEND))
vR, vE = XF, XF + 1
lab("L_scan_reset")
e("s_barrier")
reset_lists("b")
e("s_waitcnt lgkmcnt(0)")
e("s_barrier")
e("s_cmp_lg_u32 s%d, 3" % sMODE)
e("s_cbranch_scc0 L_scan_retry")
lab("L_scan_step")
e("v_add_u32 v%d, s%d, v0" % (vE, sSTEP))
e("v_lshlrev_b32 v%d, 2, v%d" % (T + 2, vE))
e("buffer_load_dword v%d, v%d, %s, 0 offen" % (T + 10, T + 2, sr(sDD, 4)))
e("buffer_load_dword v%d, v%d, %s, 0 offen" % (T + 11, T + 2, sr(sSD, 4)))
e("s_add_u32 s%d, s%d, 512" % (sSTEP, sSTEP))
e("v_cmp_gt_u32 %s, %d, v%d" % ("vcc", E, vE))
e("s_mov_b64 %s, vcc" % sr(sPEND))
e("s_waitcnt vmcnt(0)")
make_rec(T + 10, T + 11, vR, T, T + 1)
e("v_and_b32 v%d, 255, v%d" % (T + 10, T + 10))
e("v_cmp_eq_u32 vcc, s2, v%d" % (T + 10))
e("s_and_b64 %s, %s, vcc" % (sr(sPEND), sr(sPEND)))
lab("L_scan_retry")
e("s_mov_b64 exec, %s" % sr(sPEND))
e("s_cbranch_execz L_scan_b")
e("v_mov_b32 v%d, v%d" % (RE, vE))
rec_a(vR, RN, RE, EV)
e("s_waitcnt lgkmcnt(0)")
e("v_cmp_gt_u32 vcc, %d, v%d" % (CAP, RN))
e("s_andn2_b64 %s, %s, vcc" % (sr(sPEND), sr(sPEND)))
e("s_and_b64 exec, exec, vcc")
rec_b(vR, RN, T, T + 1)
e("s_waitcnt vmcnt(0)")
e("ds_write_b64 v%d, %s offset:%d" % (RN, vr(EV, 2), 3 * CS))
lab("L_scan_b")
e("s_mov_b64 exec, -1")
e("s_waitcnt lgkmcnt(0)")
e("s_barrier")
e("v_mov_b32 v%d, %d" % (T, L_CNT2))
e("ds_read_b64 %s, v%d" % (vr(T + 4, 2), T))
e("s_waitcnt lgkmcnt(0)")
e("v_max_u32 v%d, v%d, v%d" % (T + 7, T + 4, T + 5))
nop(1)
e("v_readfirstlane_b32 s%d, v%d" % (sTMP, T + 7))
e("s_mov_b32 s%d, 3" % sMODE)
e("s_cmp_gt_u32 s%d, %d" % (sTMP, CAP))
e("s_cbranch_scc1 L_flush")
e("s_mov_b32 s%d, 4" % sMODE)
e("s_cmp_ge_u32 s%d, %d" % (sSTEP, E))
e("s_cbranch_scc1 L_flush")
e("s_barrier")
e("s_branch L_scan_step")
lab("L_slow_ret")
e("s_waitcnt vmcnt(0)")
e("s_cmp_eq_u32 s%d, 4" % sMODE)
e("s_cbranch_scc1 L_epi")
e("s_branch L_scan_reset")
lab("L_codeend")

out.append('.section .rodata,"a"'); out.append(".p2align 6")
out.append(".amdhsa_kernel " + KN)
for l in ["next_free_vgpr 256", "next_free_sgpr 102", "accum_offset 256", "group_segment_fixed_size 0", "kernarg_size 72",
          "user_sgpr_count 2", "user_sgpr_kernarg_segment_ptr 1", "system_sgpr_workgroup_id_x 1"]:
    out.append("  .amdhsa_" + l)
out.append(".end_amdhsa_kernel")
if OPT["stamps"]: print(" ".join("t%d=%s" % (i, n) for i, n in enumerate(snames)))
open(sys.argv[1], "w").write("\n".join(out) + "\n")
```

```python
import sys
KN = "gather_scatter__mpnn_edge_mlp__graph_kernel"
OPT = dict(stamps=0, force_mode=0, spin=2000, gsc1=0, pf=1, epf=1, wu1=0, t01=2, wpf=1, dbg=0, enc=-1, of=0, nz1=3, w1e=0, ppf=0, ke=1, pt=0)
for a in sys.argv[2:]:
    k, v = a.split("="); OPT[k] = int(v)

N, E = 10000, 160000
CH = 625
CAP = 448
CS = CAP * 16 + 64
R = 4
L_OH, L_LIST, LSTR = 0, 8 * CS, 2560
L_CNT = L_LIST + 2 * LSTR
L_CNT2 = L_CNT + 1024
L_MODE = L_CNT2 + 8
L_EPOCH = L_CNT2 + 12
L_RING = 65536
L_A, L_B, L_C = L_RING, L_RING + 32768, 131072
L_X = L_A
L_IMG = L_A + 16384
L_W3 = 64512
SLOT = 16384
LDS = 163840
W_FLAG, W_P, W_SLOT, W_STAMP = 0x10000, 0x80000, 0x400000, 0x1000000
SENT = 0x3FFFFFFF
NLOG2E = 0xBFB8AA3B
NLN2 = 0xBF317218

out = []
def e(s): out.append("    " + s)
def lab(s): out.append(s + ":")
def nop(n): e("s_nop %d" % (n - 1))

class Al:
    def __init__(s, start): s.n = start
    def __call__(s, cnt=1, al=1):
        s.n = (s.n + al - 1) // al * al
        r = s.n; s.n += cnt; return r
va = Al(1)
def vr(b, n): return "v[%d:%d]" % (b, b + n - 1)
def sr(b, n=2): return "s[%d:%d]" % (b, b + n - 1)

sX, sEA, sSRC, sDST, sWM, sWU, sOUT, sDBG, sWS = 4, 6, 8, 10, 12, 14, 16, 18, 20
sXD, sPD, sED, sDD, sSD = 24, 28, 32, 36, 40
sW, sSB, sCB, sT, sE1, sNT, sIT, sMODE, sLVL, sSTEP, sRB, sCP, sTMP, sTMP2, sSPIN, sCS4 = range(44, 60)
sM = 60
sNA, sVA, sVB, sNB, sPA, sPB, sODD, sQ, sQ2, sPEND, sNV = 72, 74, 76, 78, 80, 82, 84, 86, 88, 90, 92
sC1, sC2 = 94, 96
sST = 98
vL = va(); vDO = va(); vAS0 = va(); vAS1 = va(); vWN = va(); vWP = va()
vP0 = va(); vP1 = va(); vOH = va(); vS = va(); vLI = va(); vTW = va(); vSW = va(); vCB = va(); vONE = va(); vFA = va(); vBF1 = va(); vEB = va(); vSL = va()
vI0 = va(2, 2); vI1 = va(2, 2)
T = va(24, 4)
Y0 = va(16, 4); Y1 = va(16, 4); EE = va(16, 4); MSG = va(8, 4); AGG = va(16, 4); U = va(16, 4)
QW = va(8, 4); ID = va(8, 4); PA = va(8, 4); OA = va(8, 4); SA = va(8, 4)
W1F = va(32, 4); XF = va(32, 4)
vSWP, vSWB, vCHB, vFLG, vW3, vFS, vIB, vPF, vCA = vDO, vOH, vS, vLI, vFA, U + 4, U + 5, SA + 7, U + 6
WT = Y0
stampn = [0]
vST = va(16, 4)
assert va.n <= 256, va.n

snames = ["start"]
def stamp(name="?", sets=(1,)):
    if OPT["stamps"] not in sets: return
    snames.append(name)
    i = stampn[0]; stampn[0] += 1
    e("s_memrealtime %s" % sr(sST)); e("s_waitcnt lgkmcnt(0)"); e("v_mov_b32 v%d, s%d" % (vST + i, sST))

def mfma(d, a, b, c):
    e("v_mfma_f32_32x32x16_bf16 %s, %s, %s, %s" % (vr(d, 16), vr(a, 4), vr(b, 4), c if isinstance(c, str) else vr(c, 16)))

def setm0(val_s=None, imm=0):
    if val_s is None: e("s_mov_b32 m0, 0x%x" % imm)
    elif imm == 0: e("s_mov_b32 m0, s%d" % val_s)
    else: e("s_add_u32 m0, s%d, 0x%x" % (val_s, imm))

def w_dma1(sbase, rowoff, ldsbase, i, tmp):
    e("s_add_u32 m0, s%d, 0x%x" % (sTMP2, ldsbase + i * 1024))
    e("v_add_u32 v%d, 0x%x, v%d" % (tmp, rowoff * 256 + i * 4096, vSW))
    e("global_load_lds_dwordx4 v%d, %s" % (tmp, sr(sbase)))
def w_dma(sbase, rowoff, ldsbase):
    for i in range(4): w_dma1(sbase, rowoff, ldsbase, i, T + 20)

def w_frag(dst, vaddr, ldsbase):
    e("v_add_u32 v%d, 0x%x, v%d" % (T + 20, ldsbase, vaddr))
    for j in range(8):
        for u in range(2):
            e("ds_read_b64_tr_b16 %s, v%d offset:%d" % (vr(dst + 4 * j + 2 * u, 2), T + 20, j * 1024 + u * 256))

def tile_frag(dst, sbase_imm, segstride):
    e("s_mul_i32 s%d, s%d, %d" % (sTMP, sSB, 4 * segstride))
    e("s_add_u32 s%d, s%d, 0x%x" % (sTMP, sTMP, sbase_imm))
    e("v_add_u32 v%d, s%d, v%d" % (T + 21, sTMP, vAS0))
    e("v_add_u32 v%d, s%d, v%d" % (T + 22, sTMP, vAS1))
    for j in range(8):
        e("ds_read_b128 %s, v%d offset:%d" % (vr(dst + 4 * j, 4), T + 21 + (j & 1), (j >> 1) * segstride))

def node_idx(schunk):
    e("v_lshrrev_b32 v%d, 2, v%d" % (T, vL))
    e("s_lshl_b32 s%d, s%d, 8" % (sTMP, sSB))
    e("s_add_u32 s%d, s%d, s%d" % (sTMP, sTMP, schunk))
    e("v_lshl_add_u32 v%d, v%d, 9, s%d" % (vI0, T, sTMP))
    e("v_add_u32 v%d, 0x2000, v%d" % (vI1, vI0))

def x_dma():
    e("s_lshl_b32 s%d, s%d, 11" % (sTMP, sW))
    e("s_add_u32 m0, s%d, 0x%x" % (sTMP, L_X))
    nop(1)
    e("buffer_load_dwordx4 %s, %s, 0 idxen offen lds" % (vr(vI0, 2), sr(sXD, 4)))
    e("s_add_u32 m0, s%d, 0x%x" % (sTMP, L_X + 1024))
    nop(1)
    e("buffer_load_dwordx4 %s, %s, 0 idxen offen lds" % (vr(vI1, 2), sr(sXD, 4)))

def srd(d, base, stride, nrec, add=0):
    if add:
        e("s_add_u32 s%d, s%d, 0x%x" % (d, base, add))
        e("s_addc_u32 s%d, s%d, 0" % (d + 1, base + 1))
        if stride: e("s_or_b32 s%d, s%d, 0x%x" % (d + 1, d + 1, stride << 16))
    else:
        e("s_mov_b32 s%d, s%d" % (d, base))
        if stride: e("s_or_b32 s%d, s%d, 0x%x" % (d + 1, base + 1, stride << 16))
        else: e("s_mov_b32 s%d, s%d" % (d + 1, base + 1))
    e("s_mov_b32 s%d, %d" % (d + 2, nrec))
    e("s_mov_b32 s%d, 0x20000" % (d + 3))

TA = (T + 2, T + 3, T + 16)
def tr_addr(sbase, imm):
    e("s_add_u32 s%d, s%d, 0x%x" % (sTMP, sbase, imm & 0xffffffff))
    e("v_add_u32 v%d, s%d, v%d" % (TA[0], sTMP, vTW))
    e("v_xor_b32 v%d, 16, v%d" % (TA[1], TA[0]))
    e("v_lshl_add_u32 v%d, v%d, 4, s%d" % (TA[2], vL, sTMP))

def tr_store(src, srdreg, flags, rezero=None):
    e("ds_write_b128 v%d, %s" % (TA[0], vr(src, 4)))
    e("ds_write_b128 v%d, %s" % (TA[1], vr(src + 4, 4)))
    e("ds_read_b128 %s, v%d" % (vr(src, 4), TA[2]))
    e("ds_read_b128 %s, v%d offset:1024" % (vr(src + 4, 4), TA[2]))
    e("s_waitcnt lgkmcnt(1)")
    e("buffer_store_dwordx4 %s, %s, %s, 0 idxen offen%s" % (vr(src, 4), vr(vI0, 2), sr(srdreg, 4), flags))
    e("s_waitcnt lgkmcnt(0)")
    e("buffer_store_dwordx4 %s, %s, %s, 0 idxen offen%s" % (vr(src + 4, 4), vr(vI1, 2), sr(srdreg, 4), flags))
    if rezero is not None:
        e("ds_write_b128 v%d, %s" % (TA[0], vr(rezero, 4)))
        e("ds_write_b128 v%d, %s" % (TA[1], vr(rezero, 4)))

def p_out(rezero=None):
    for j in range(8):
        e("v_pk_mul_f32 %s, %s, %s" % (vr(EE + 2 * j, 2), vr(EE + 2 * j, 2), sr(sC1)))
    for j in range(8):
        e("v_cvt_pk_bf16_f32 v%d, v%d, v%d" % (MSG + j, EE + 2 * j, EE + 2 * j + 1))
    tr_store(MSG, sPD, " sc1", rezero)

def p_compute(wf):
    for j in range(8):
        mfma(EE, wf + 4 * j, XF + 4 * j, "0" if j == 0 else EE)
    tr_addr(sRB, SLOT)
    nop(8)
    p_out()

def q_compute():
    w_frag(WT, vWN, L_C)
    for j in range(4): e("ds_read_u16_d16_hi v%d, v%d offset:%d" % (U + j, vW3, L_W3 + 256 * j))
    for j in range(8):
        e("s_waitcnt lgkmcnt(%d)" % min(15, 2 * (7 - j) + 4))
        mfma(AGG, XF + 4 * j, WT + 4 * j, "0" if j == 0 else AGG)
    id_compute()
    e("s_waitcnt lgkmcnt(0)")
    e("s_mov_b32 exec_lo, 0")
    for j in range(4): e("v_mov_b32 v%d, v%d" % (AGG + 8 + j, U + j))
    e("s_mov_b32 exec_lo, -1")
    for j in range(8): e("v_pk_mul_f32 %s, %s, %s" % (vr(AGG + 2 * j, 2), vr(AGG + 2 * j, 2), sr(sC1)))
    for j in range(8): e("v_cvt_pk_bf16_f32 v%d, v%d, v%d" % (QW + j, AGG + 2 * j, AGG + 2 * j + 1))
    for j in range(16): e("v_mov_b32 v%d, 0" % (AGG + j))

def u_compute():
    w_frag(WT, vWP, L_C)
    for j in range(8):
        e("s_waitcnt lgkmcnt(%d)" % (2 * (7 - j)))
        mfma(U, WT + 4 * j, XF + 4 * j, "0" if j == 0 else U)

def id_compute():
    e("v_and_b32 v%d, 31, v%d" % (T + 10, vL))
    e("v_lshrrev_b32 v%d, 5, v%d" % (T + 11, vL))
    e("v_lshlrev_b32 v%d, 3, v%d" % (T + 11, T + 11))
    e("v_sub_u32 v%d, v%d, v%d" % (T + 10, T + 10, T + 11))
    e("v_and_b32 v%d, 1, v%d" % (T + 11, vL))
    e("v_lshlrev_b32 v%d, 4, v%d" % (T + 11, T + 11))
    e("v_lshlrev_b32 v%d, v%d, v%d" % (T + 11, T + 11, vBF1))
    e("v_ashrrev_i32 v%d, 1, v%d" % (T + 10, T + 10))
    for j in range(8):
        e("v_cmp_eq_u32 vcc, %d, v%d" % ((j & 3) + (j >> 2) * 8, T + 10))
        nop(2)
        e("v_cndmask_b32_e64 v%d, 0, v%d, vcc" % (ID + j, T + 11))

def flag_slot():
    e("s_and_b32 s%d, s2, 7" % sTMP)
    e("s_lshl_b32 s%d, s%d, 5" % (sTMP, sTMP))
    e("s_lshr_b32 s%d, s2, 3" % sQ)
    e("s_add_u32 s%d, s%d, s%d" % (sTMP, sTMP, sQ))
    e("s_lshl_b32 s%d, s%d, 5" % (sTMP, sTMP))
    e("s_add_u32 s%d, s%d, 0x%x" % (sTMP, sTMP, W_FLAG))

def reset_lists(tag):
    for j in range(4): e("v_mov_b32 v%d, 0" % (T + j))
    e("v_lshlrev_b32 v%d, 4, v0" % (T + 8))
    for j in range(7): e("ds_write_b128 v%d, %s offset:%d" % (T + 8, vr(T, 4), j * 8192))
    e("v_cmp_lt_u32 vcc, 31, v0")
    nop(2)
    e("v_cndmask_b32_e64 v%d, 0, -1, vcc" % (T + 4))
    for j in range(1, 4): e("v_mov_b32 v%d, v%d" % (T + 4 + j, T + 4))
    e("v_cmp_gt_u32 vcc, 352, v0")
    e("s_and_b64 exec, vcc, -1")
    e("s_cbranch_execz L_rl_%s" % tag)
    e("ds_write_b128 v%d, %s offset:%d" % (T + 8, vr(T + 4, 4), 7 * 8192))
    lab("L_rl_%s" % tag)
    e("s_mov_b64 exec, -1")
    e("v_mov_b32 v%d, %d" % (T + 8, L_CNT2))
    e("ds_write_b64 v%d, %s" % (T + 8, vr(T, 2)))

def rec_a(x, n, eid, ev):
    e("v_bfe_u32 v%d, v%d, 19, 1" % (n, x))
    e("v_lshlrev_b32 v%d, 2, v%d" % (n, n))
    e("ds_add_rtn_u32 v%d, v%d, v%d offset:%d" % (n, n, vONE, L_CNT2))
    if ev is None: return
    e("v_lshlrev_b32 v%d, 3, v%d" % (eid, eid))
    e("buffer_load_dwordx2 %s, v%d, %s, 0 offen" % (vr(ev, 2), eid, sr(sED, 4)))

def rec_b(x, n, sh, t1):
    e("v_mul_u32_u24 v%d, %d, v%d" % (t1, LSTR // 16, sh))
    e("v_lshl_add_u32 v%d, v%d, 2, v%d" % (t1, n, t1))
    e("v_lshlrev_b32 v%d, 4, v%d" % (n, n))
    e("v_and_b32 v%d, 0x3fff, v%d" % (vFA, x))
    e("ds_write_b32 v%d, v%d offset:%d" % (t1, vFA, L_LIST))
    e("v_bfe_u32 v%d, v%d, 17, 3" % (t1, x))
    e("v_mad_u32_u24 v%d, v%d, v%d, v%d" % (t1, t1, vCB, n))
    e("v_bfe_u32 v%d, v%d, 14, 3" % (vFA, x))
    e("v_lshl_add_u32 v%d, v%d, 1, v%d" % (t1, vFA, t1))
    e("ds_write_b16 v%d, v%d" % (t1, vBF1))
    e("v_mad_u32_u24 v%d, v%d, s%d, v%d" % (n, sh, sCS4, n))

def make_rec(dst, src, rec, t0, t1):
    e("v_bfe_u32 v%d, v%d, 9, 5" % (t0, dst))
    e("v_and_b32 v%d, 0x13, v%d" % (rec, t0))
    e("v_and_b32 v%d, 4, v%d" % (t1, t0))
    e("v_lshl_or_b32 v%d, v%d, 1, v%d" % (rec, t1, rec))
    e("v_bfe_u32 v%d, v%d, 3, 1" % (t1, t0))
    e("v_lshl_or_b32 v%d, v%d, 2, v%d" % (rec, t1, rec))
    e("v_bfe_u32 v%d, v%d, 8, 1" % (t1, dst))
    e("v_lshl_or_b32 v%d, v%d, 5, v%d" % (rec, t1, rec))
    e("v_and_b32 v%d, 0x3fff, v%d" % (t1, src))
    e("v_lshl_or_b32 v%d, v%d, 14, v%d" % (rec, rec, t1))

out.append("; @launch grid=(256,1,1) block=(512,1,1) lds=%d" % LDS)
out.append('.amdgcn_target "amdgcn-amd-amdhsa--gfx950"')
out.append(".text"); out.append(".globl " + KN); out.append(".p2align 8"); out.append(".type %s,@function" % KN)
lab(KN)
e("s_cmp_ge_u32 s2, 256")
e("s_cbranch_scc1 L_end")
e("s_load_dwordx16 s[4:19], s[0:1], 0")
e("s_load_dwordx2 s[20:21], s[0:1], 64")
if OPT["stamps"]:
    e("s_memrealtime %s" % sr(sST))
e("v_lshrrev_b32 v%d, 6, v0" % T)
e("v_and_b32 v%d, 63, v0" % vL)
e("v_readfirstlane_b32 s%d, v%d" % (sW, T))
if OPT["pf"]:
    e("s_sub_u32 s%d, s%d, 3" % (sTMP, sW))
    e("s_cmp_gt_u32 s%d, 1" % sTMP)
    e("s_cbranch_scc1 L_nopf")
    e("s_getpc_b64 %s" % sr(sQ))
    lab("L_pc")
    e("v_and_b32 v%d, 127, v0" % (T + 18))
    e("v_lshlrev_b32 v%d, 7, v%d" % (T + 18, T + 18))
    e("v_min_u32 v%d, L_codeend-L_pc-4, v%d" % (T + 18, T + 18))
    e("global_load_dword v%d, v%d, %s" % (T + 18, T + 18, sr(sQ)))
    lab("L_nopf")
ZR = U
for j in range(4): e("v_mov_b32 v%d, 0" % (ZR + j))
e("v_lshlrev_b32 v%d, 4, v0" % (T + 8))
NZ1 = OPT["nz1"]
for j in range(NZ1): e("ds_write_b128 v%d, %s offset:%d" % (T + 8, vr(ZR, 4), j * 8192))
e("s_mul_i32 s%d, s2, %d" % (sTMP, CH * 4))
e("v_lshl_add_u32 v%d, v0, 2, s%d" % (T + 16, sTMP))
e("s_lshr_b32 s%d, s%d, 2" % (sSB, sW))
e("s_and_b32 s%d, s%d, 3" % (sCB, sW))
for j in range(4): e("v_mov_b32 v%d, 0x%x" % (T + 4 + j, SENT))
e("v_add_u32 v%d, 0x%x, v%d" % (vIB, L_IMG, T + 8))
e("v_lshrrev_b32 v%d, 4, v%d" % (T, vL))
e("v_xor_b32 v%d, v%d, v%d" % (T + 1, T, vL))
e("v_and_b32 v%d, 3, v%d" % (T + 1, T + 1))
e("s_lshl_b32 s%d, s%d, 6" % (sTMP, sCB))
e("v_lshl_add_u32 v%d, v%d, 4, s%d" % (vI0 + 1, T + 1, sTMP))
e("v_mov_b32 v%d, v%d" % (vI1 + 1, vI0 + 1))
e("v_lshrrev_b32 v%d, 2, v%d" % (T + 1, vL))
e("v_and_b32 v%d, 3, v%d" % (T + 2, vL))
e("v_lshlrev_b32 v%d, 8, v%d" % (T + 1, T + 1))
e("v_lshl_add_u32 v%d, v%d, 4, v%d" % (T + 1, T + 2, T + 1))
e("s_lshl_b32 s%d, s%d, 14" % (sTMP2, sSB))
e("s_add_u32 s%d, s%d, s%d" % (sTMP, sTMP, sTMP2))
e("v_add_u32 v%d, s%d, v%d" % (vSW, sTMP, T + 1))
e("s_lshl_b32 s%d, s%d, 13" % (sTMP2, sCB))
e("s_lshl_b32 s%d, s%d, 12" % (sTMP, sSB))
e("s_add_u32 s%d, s%d, s%d" % (sTMP2, sTMP2, sTMP))
e("v_cmp_gt_u32 %s, %d, v0" % ("vcc", CH - 512))
e("s_mov_b64 %s, vcc" % sr(sQ2))
node_idx(2)
e("s_waitcnt lgkmcnt(0)")
if OPT["stamps"]:
    e("v_mov_b32 v%d, s%d" % (vST, sST)); stampn[0] = 1
stamp("karg", (2,3))
e("global_load_dword v%d, v%d, %s" % (T + 10, T + 16, sr(sDST)))
e("global_load_dword v%d, v%d, %s" % (T + 11, T + 16, sr(sSRC)))
srd(sXD, sX, 256, N)
e("s_cmp_ge_u32 s%d, 2" % sW)
e("s_cbranch_scc1 L_no2")
e("s_mov_b64 exec, %s" % sr(sQ2))
e("global_load_dword v%d, v%d, %s offset:2048" % (T + 12, T + 16, sr(sDST)))
e("global_load_dword v%d, v%d, %s offset:2048" % (T + 13, T + 16, sr(sSRC)))
e("s_mov_b64 exec, -1")
e("s_branch L_nowpf")
lab("L_no2")
e("s_lshr_b32 s%d, s2, 3" % sTMP)
e("s_cmp_lg_u32 s%d, 2" % sW)
e("s_cbranch_scc1 L_noe")
e("global_load_dword v%d, v%d, %s sc1" % (T + 15, ZR, sr(sWS)))
lab("L_noe")
if OPT["pt"] & 1:
    e("s_cmp_lg_u32 s%d, 3" % sW)
    e("s_cbranch_scc1 L_nt3")
    e("s_lshl_b32 s%d, s2, 13" % sQ)
    e("s_add_u32 s%d, s%d, 0x%x" % (sQ, sQ, W_SLOT))
    e("v_lshl_add_u32 v%d, v%d, 7, s%d" % (T + 21, vL, sQ))
    e("v_add_u32 v%d, 0x200000, v%d" % (T + 22, T + 21))
    e("global_load_dword v%d, v%d, %s sc1" % (T + 21, T + 21, sr(sWS)))
    e("global_load_dword v%d, v%d, %s sc1" % (T + 22, T + 22, sr(sWS)))
    lab("L_nt3")
if OPT["pt"] & 2:
    e("s_cmp_lg_u32 s%d, 4" % sW)
    e("s_cbranch_scc1 L_nt4")
    e("s_lshl_b32 s%d, s2, 8" % sQ)
    e("s_add_u32 s%d, s%d, 0x%x" % (sQ, sQ, W_P))
    e("v_min_u32 v%d, 39, v%d" % (T + 21, vL))
    e("v_lshl_add_u32 v%d, v%d, 16, s%d" % (T + 21, T + 21, sQ))
    e("global_load_dword v%d, v%d, %s offset:128 sc1" % (T + 22, T + 21, sr(sWS)))
    e("global_load_dword v%d, v%d, %s sc1" % (T + 21, T + 21, sr(sWS)))
    lab("L_nt4")
e("s_cmp_lg_u32 s%d, 7" % sW)
e("s_cbranch_scc1 L_nw7")
e("s_lshl_b32 s%d, s%d, 11" % (sQ, sTMP))
e("v_lshl_add_u32 v%d, v%d, 5, s%d" % (T + 21, vL, sQ))
e("global_load_dword v%d, v%d, %s" % (T + 21, T + 21, sr(sWU)))
lab("L_nw7")
e("s_cmp_lg_u32 s%d, 6" % sW)
e("s_cbranch_scc1 L_nw6")
e("s_mul_i32 s%d, s%d, 2080" % (sQ, sTMP))
e("v_lshl_add_u32 v%d, v%d, 5, s%d" % (T + 21, vL, sQ))
e("global_load_dword v%d, v%d, %s offset:60" % (T + 21, T + 21, sr(sWM)))
lab("L_nw6")
e("s_cmp_lg_u32 s%d, 5" % sW)
e("s_cbranch_scc1 L_nowpf")
e("s_mul_i32 s%d, s2, %d" % (sQ, CH * 8))
e("v_mul_u32_u24 v%d, 76, v%d" % (T + 21, vL))
e("v_add_u32 v%d, s%d, v%d" % (T + 21, sQ, T + 21))
e("global_load_dword v%d, v%d, %s offset:104" % (T + 21, T + 21, sr(sEA)))
lab("L_nowpf")
x_dma()
for i in range(OPT["w1e"]): w_dma1(sWM, 0, L_B, i, T + 20)
for j in range(2): e("ds_write_b128 v%d, %s offset:%d" % (vIB, vr(T + 4, 4), j * 8192))
for j in range(NZ1, 7): e("ds_write_b128 v%d, %s offset:%d" % (T + 8, vr(ZR, 4), j * 8192))
e("v_subrev_u32 v%d, 32, v0" % (T + 9))
e("v_cmp_gt_u32 vcc, 320, v%d" % (T + 9))
e("v_mov_b32 v%d, 1" % vONE)
e("v_mov_b32 v%d, %d" % (T + 14, L_EPOCH))
e("v_cndmask_b32_e64 v%d, 0, -1, vcc" % Y0)
for j in range(1, 4): e("v_mov_b32 v%d, v%d" % (Y0 + j, Y0))
e("v_cmp_gt_u32 vcc, 420, v0")
e("s_and_b64 exec, vcc, -1")
e("s_cbranch_execz L_rl_a")
e("ds_write_b128 v%d, %s offset:%d" % (T + 8, vr(Y0, 4), 7 * 8192))
lab("L_rl_a")
e("s_mov_b64 exec, -1")
for i in range(OPT["w1e"], 4): w_dma1(sWM, 0, L_B, i, T + 20)
stamp("w1iss", (3,))
e("v_lshrrev_b32 v%d, 1, v0" % (T + 4))
e("v_and_b32 v%d, 1, v0" % (T + 5))
e("v_lshlrev_b32 v%d, 4, v%d" % (T + 5, T + 5))
e("v_lshl_add_u32 v%d, v%d, 6, v%d" % (T + 19, T + 4, T + 5))
e("v_add_u32 v%d, 0x%x, v%d" % (T + 19, L_IMG, T + 19))
e("v_lshlrev_b32 v%d, 2, v%d" % (vCA, T + 4))
e("s_mov_b32 s%d, %d" % (sCS4, CS // 4))
e("s_lshl_b32 s%d, s2, 5" % sTMP)
e("s_add_u32 s%d, s%d, 0x%x" % (sTMP, sTMP, W_SLOT))
e("v_lshl_add_u32 v%d, v%d, 13, v%d" % (T + 23, T + 4, T + 5))
e("v_add_u32 v%d, s%d, v%d" % (T + 23, sTMP, T + 23))
e("v_and_b32 v%d, 31, v%d" % (T, vL))
e("v_lshrrev_b32 v%d, 5, v%d" % (T + 1, vL))
e("v_bfe_u32 v%d, v%d, 2, 2" % (T + 2, vL))
e("v_xor_b32 v%d, v%d, v%d" % (T + 3, T + 1, T + 2))
e("v_lshlrev_b32 v%d, 4, v%d" % (T + 3, T + 3))
e("v_lshl_add_u32 v%d, v%d, 6, v%d" % (vAS0, T, T + 3))
e("v_xor_b32 v%d, 32, v%d" % (vAS1, vAS0))
e("v_lshlrev_b32 v%d, 1, v%d" % (T + 3, T + 1))
e("v_xor_b32 v%d, v%d, v%d" % (T + 3, T + 3, T + 2))
e("v_lshlrev_b32 v%d, 4, v%d" % (T + 3, T + 3))
e("v_lshl_add_u32 v%d, v%d, 6, v%d" % (vTW, T, T + 3))
e("v_lshl_add_u32 v%d, v%d, 3, v%d" % (T + 3, T + 1, T + 2))
e("s_lshl_b32 s%d, s%d, 13" % (sTMP, sCB))
e("v_lshl_add_u32 v%d, v%d, 6, s%d" % (T + 3, T + 3, sTMP))
e("v_bfe_u32 v%d, v%d, 4, 1" % (T + 4, vL))
e("v_and_b32 v%d, 3, v%d" % (T + 5, vL))
e("v_lshl_add_u32 v%d, v%d, 2, v%d" % (T + 6, T + 4, T + 5))
e("v_lshl_add_u32 v%d, v%d, 3, v%d" % (vWN, T + 6, T + 3))
e("v_and_b32 v%d, 1, v%d" % (T + 6, vL))
e("v_bfe_u32 v%d, v%d, 1, 1" % (T + 7, vL))
e("v_lshl_add_u32 v%d, v%d, 1, v%d" % (T + 9, T + 4, T + 7))
e("v_lshl_add_u32 v%d, v%d, 2, v%d" % (T + 17, T + 6, T + 9))
e("v_lshl_add_u32 v%d, v%d, 3, v%d" % (vWP, T + 17, T + 3))
e("v_mov_b32 v%d, %d" % (vCB, CS))
e("s_mul_i32 s%d, s%d, %d" % (sTMP, sSB, 4 * CS))
e("v_lshl_add_u32 v%d, v%d, 4, s%d" % (T + 3, T, sTMP))
e("v_mad_u32_u24 v%d, v%d, v%d, v%d" % (vEB, T + 1, vCB, T + 3))
e("v_lshl_add_u32 v%d, v%d, 2, v%d" % (T + 3, T + 1, T + 2))
e("v_lshl_add_u32 v%d, v%d, 4, s%d" % (T + 3, T + 3, sTMP))
e("v_lshl_add_u32 v%d, v%d, 3, v%d" % (T + 3, T + 6, T + 3))
e("v_mad_u32_u24 v%d, v%d, v%d, v%d" % (vSL, T + 9, vCB, T + 3))
e("s_lshl_b32 s%d, s%d, 6" % (sTMP, sCB))
e("v_lshl_add_u32 v%d, v%d, 1, s%d" % (vW3, T, sTMP))
srd(sPD, sWS, 256, N, W_P)
srd(sED, sEA, 0, E * 8)
e("s_mov_b32 s%d, 0x%x" % (sC1, NLOG2E)); e("s_mov_b32 s%d, 0x%x" % (sC1 + 1, NLOG2E))
e("v_mov_b32 v%d, 0x3f80" % vBF1)
e("s_mov_b32 s%d, 0x%x" % (sC2, NLN2)); e("s_mov_b32 s%d, 0x%x" % (sC2 + 1, NLN2))
e("s_mov_b32 s%d, 0xaaaaaaaa" % sODD); e("s_mov_b32 s%d, 0xaaaaaaaa" % (sODD + 1))
e("s_lshl_b32 s%d, s%d, 11" % (sRB, sW))
e("s_add_u32 s%d, s%d, 0x%x" % (sRB, sRB, L_RING))
e("v_add_u32 v%d, s%d, v%d" % (vP0, sRB, vAS0))
e("v_add_u32 v%d, s%d, v%d" % (vP1, sRB, vAS1))
for j in range(6): e("v_mov_b32 v%d, 0" % (SA + j)); e("v_mov_b32 v%d, 0" % (OA + j))
RA, RB_, RN, RE, EV = PA, PA + 4, OA, SA, EE
e("s_lshl_b32 s%d, s2, 13" % sTMP)
e("s_add_u32 s%d, s%d, 0x%x" % (sTMP, sTMP, W_SLOT))
e("v_lshl_add_u32 v%d, v0, 4, s%d" % (vSWP, sTMP))
e("v_lshrrev_b32 v%d, 1, v0" % vCHB)
e("s_and_b32 s%d, s2, 7" % sTMP)
e("s_lshl_b32 s%d, s%d, 13" % (sTMP, sTMP))
e("s_add_u32 s%d, s%d, 0x%x" % (sTMP, sTMP, W_FLAG))
e("v_lshl_add_u32 v%d, v%d, 5, s%d" % (vFLG, vCHB, sTMP))
e("v_mul_u32_u24 v%d, %d, v%d" % (vCHB, CH, vCHB))
e("s_mov_b32 s%d, 0" % sLVL)
e("s_mov_b32 s%d, 0" % sSPIN)
e("s_mov_b32 s%d, 0" % sMODE)
e("s_mov_b64 %s, -1" % sr(sNA))
e("v_add_u32 v%d, 0x200000, v%d" % (vSWB, vSWP))
flag_slot()
e("v_lshl_add_u32 v%d, v%d, 13, s%d" % (vFS, vL, sTMP))
e("s_and_b32 s%d, s2, 0xf8" % sTMP)
e("s_lshr_b32 s%d, s%d, 2" % (sQ, sTMP))
e("s_lshl_b64 %s, 1, s%d" % (sr(sNV), sQ))
e("s_add_u32 s%d, s%d, s%d" % (sTMP, sTMP, sW))
e("v_lshl_add_u32 v%d, v%d, 8, s%d" % (vPF, vL, sTMP))
e("s_mov_b32 s%d, 0x%x" % (sCP, L_IMG))
e("s_lshl_b32 s%d, s%d, 13" % (sTMP, sSB))
e("s_add_u32 s%d, s%d, 0x%x" % (sTMP, sTMP, L_X))
e("v_add_u32 v%d, s%d, v%d" % (U + 8, sTMP, vAS0))
e("v_add_u32 v%d, s%d, v%d" % (U + 9, sTMP, vAS1))
e("v_add_u32 v%d, 0x%x, v%d" % (U + 10, L_B, vWP))
stamp("pre", (3,))
tr_addr(sRB, 16384 - L_RING)
e("s_waitcnt vmcnt(6)")
stamp("dst", (3,))
e("v_and_b32 v%d, 255, v%d" % (T + 8, T + 10))
e("v_lshlrev_b32 v%d, 2, v%d" % (T + 6, T + 8))
e("v_lshl_add_u32 v%d, v%d, 6, s%d" % (T + 8, T + 8, sCP))
e("v_and_b32 v%d, 255, v%d" % (T + 9, T + 12))
e("v_lshlrev_b32 v%d, 2, v%d" % (T + 7, T + 9))
e("v_lshl_add_u32 v%d, v%d, 6, s%d" % (T + 9, T + 9, sCP))
make_rec(T + 10, T + 11, T + 4, T, T + 1)
e("v_lshl_or_b32 v%d, v0, 20, v%d" % (T + 4, T + 4))
e("s_cmp_ge_u32 s%d, 2" % sW)
e("s_cbranch_scc1 L_mr2")
make_rec(T + 12, T + 13, T + 5, T, T + 1)
e("v_add_u32 v%d, 512, v0" % T)
e("v_lshl_or_b32 v%d, v%d, 20, v%d" % (T + 5, T, T + 5))
lab("L_mr2")
e("s_lshl_b32 s%d, s%d, 7" % (sTMP, sW))
e("v_lshl_add_u32 v%d, v%d, 4, s%d" % (T + 17, vL, sTMP))
e("v_add_u32 v%d, 0x10000, v%d" % (T + 17, T + 17))
e("s_add_u32 m0, s%d, %d" % (sTMP, L_W3))
e("s_mov_b64 exec, 0xff")
e("global_load_lds_dwordx4 v%d, %s" % (T + 17, sr(sWM)))
e("s_mov_b64 exec, -1")
w_dma(sWM, 128, L_C)
stamp("w2iss", (3,))
e("s_waitcnt vmcnt(5) lgkmcnt(0)")
stamp("w1land", (3,))
e("s_barrier")
stamp("bar0", (1,2,3,4))
def rd(j):
    e("ds_read_b128 %s, v%d offset:%d" % (vr(XF + 4 * j, 4), U + 8 + (j & 1), (j >> 1) * 2048))
    for u in range(2):
        e("ds_read_b64_tr_b16 %s, v%d offset:%d" % (vr(W1F + 4 * j + 2 * u, 2), U + 10, j * 1024 + u * 256))
for j in range(5): rd(j)
for j in range(8):
    e("s_waitcnt lgkmcnt(%d)" % (3 * min(4, 7 - j) + (1 if j > 2 else 0)))
    mfma(EE, W1F + 4 * j, XF + 4 * j, "0" if j == 0 else EE)
    if j + 5 < 8: rd(j + 5)
    if j == 2: e("ds_add_rtn_u32 v%d, v%d, v%d offset:%d" % (T + 6, T + 6, vONE, L_CNT))
stamp("pmf", (2,))
cold = []
def put_rec(b, r, rec):
    e("v_cmp_gt_u32 vcc, 12, v%d" % r)
    e("v_mul_u32_u24 v%d, 11, v%d" % (T, r))
    e("v_lshrrev_b32 v%d, 5, v%d" % (T, T))
    e("v_add_u32 v%d, v%d, v%d" % (T, T, r))
    e("v_lshl_add_u32 v%d, v%d, 2, v%d" % (T, T, b))
    e("s_andn2_b64 %s, exec, vcc" % sr(sQ))
    e("s_cbranch_scc1 L_putx%d" % b)
    lab("L_putr%d" % b)
    e("ds_write_b32 v%d, v%d" % (T, rec))
    e("s_mov_b64 exec, -1")
    cold.append((b, r, rec))
e("s_waitcnt lgkmcnt(0)")
e("s_cmp_ge_u32 s%d, 2" % sW)
e("s_cbranch_scc1 L_rk2")
e("s_mov_b64 exec, %s" % sr(sQ2))
e("ds_add_rtn_u32 v%d, v%d, v%d offset:%d" % (T + 7, T + 7, vONE, L_CNT))
e("s_mov_b64 exec, -1")
lab("L_rk2")
put_rec(T + 8, T + 6, T + 4)
nop(3)
p_out(ZR)
stamp("pst", (1,2,4))
e("s_cmp_gt_u32 s%d, 2" % sW)
e("s_cbranch_scc1 L_rk3")
e("s_cmp_eq_u32 s%d, 2" % sW)
e("s_cbranch_scc1 L_rk4")
e("s_mov_b64 exec, %s" % sr(sQ2))
put_rec(T + 9, T + 7, T + 5)
e("s_branch L_rk3")
lab("L_rk4")
e("ds_write_b32 v%d, v%d" % (T + 14, T + 15))
lab("L_rk3")
e("v_add_u32 v%d, 0x200000, v%d" % (T + 15, T + 23))
e("s_waitcnt vmcnt(2) lgkmcnt(0)")
stamp("w2land", (2,))
e("s_barrier")
stamp("barA", (1,2,3))
e("ds_read_b32 v%d, v%d" % (T + 9, T + 14))
e("ds_read_b128 %s, v%d" % (vr(T, 4), T + 19))
e("ds_read_b32 v%d, v%d offset:%d" % (T + 13, vCA, L_CNT))
e("ds_read_b128 %s, v%d offset:32" % (vr(T + 4, 4), T + 19))
e("s_waitcnt lgkmcnt(3)")
e("v_readfirstlane_b32 s%d, v%d" % (sE1, T + 9))
e("s_add_u32 s%d, s%d, 1" % (sE1, sE1))
e("s_mul_i32 s%d, s%d, 0x9e3779b1" % (sT, sE1))
e("s_waitcnt lgkmcnt(2)")
e("v_mov_b32 v%d, s%d" % (T + 3, sT))
e("global_store_dwordx4 v%d, %s, %s sc1" % (T + 23, vr(T, 4), sr(sWS)))
e("s_waitcnt lgkmcnt(0)")
e("v_cmp_le_u32 vcc, 6, v%d" % (T + 13))
e("v_mov_b32 v%d, s%d" % (T + 7, sT))
e("s_and_b64 exec, vcc, -1")
e("s_cbranch_execz L_pub1")
e("global_store_dwordx4 v%d, %s, %s sc1" % (T + 15, vr(T + 4, 4), sr(sWS)))
e("s_mov_b32 s%d, 1" % sLVL)
e("v_cmp_le_u32 vcc, 12, v%d" % (T + 13))
e("s_and_b64 exec, exec, vcc")
e("s_cbranch_execnz L_pub_more")
lab("L_pub1")
e("s_mov_b64 exec, -1")
stamp("pub", (2,3,4))
q_compute()
e("v_mov_b32 v%d, s%d" % (T, sT))
e("v_not_b32 v%d, v%d" % (T + 1, T))
stamp("Q", (2,))
e("s_cmp_eq_u32 s%d, 1" % sLVL)
e("s_cbranch_scc1 L_pw2")
e("s_waitcnt vmcnt(1)")
lab("L_pw2")
e("s_waitcnt vmcnt(2)")
e("s_mov_b32 s%d, 0" % sLVL)
stamp("pack", (2,))
e("s_barrier")
e("s_cmp_lg_u32 s%d, 0" % sW)
e("s_cbranch_scc1 L_noflag")
e("s_mov_b64 exec, 0xff")
e("global_store_dwordx2 v%d, %s, %s sc1" % (vFS, vr(T, 2), sr(sWS)))
e("s_mov_b64 exec, -1")
lab("L_noflag")
stamp("flag", (1,2,4,5))
if OPT["stamps"] == 4: e("s_waitcnt vmcnt(0)"); stamp("puback", (4,))
e("global_load_dwordx4 %s, v%d, %s sc1" % (vr(RA, 4), vSWP, sr(sWS)))
e("global_load_dwordx4 %s, v%d, %s sc1" % (vr(RB_, 4), vSWB, sr(sWS)))
if OPT["stamps"] == 4:
    e("s_waitcnt vmcnt(1)"); stamp("swA", (4,)); e("s_waitcnt vmcnt(0)"); stamp("swB", (4,))
w_dma(sWU, 0, L_C)
stamp("wiss", (1,5))
if OPT["force_mode"] == 2:
    e("s_branch L_timeout")
e("s_waitcnt vmcnt(4)")
e("s_branch L_pollD")
lab("L_level")
e("s_mov_b64 %s, %s" % (sr(sPA), sr(sNA))); e("s_mov_b64 %s, %s" % (sr(sPB), sr(sNA)))
e("v_add_u32 v%d, 0x200000, v%d" % (vSWB, vSWP))
lab("L_poll")
e("s_mov_b64 exec, %s" % sr(sPA))
e("s_cbranch_execz L_pollB")
e("global_load_dwordx4 %s, v%d, %s sc1" % (vr(RA, 4), vSWP, sr(sWS)))
lab("L_pollB")
e("s_mov_b64 exec, %s" % sr(sPB))
e("s_cbranch_execz L_pollC")
e("global_load_dwordx4 %s, v%d, %s sc1" % (vr(RB_, 4), vSWB, sr(sWS)))
lab("L_pollC")
e("s_mov_b64 exec, %s" % sr(sNA))
e("s_add_u32 s%d, s%d, 1" % (sSPIN, sSPIN))
e("s_waitcnt vmcnt(0)")
lab("L_pollD")
e("v_or3_b32 v%d, v%d, v%d, v%d" % (T, RA, RA + 1, RA + 2))
e("v_or3_b32 v%d, v%d, v%d, v%d" % (T + 1, RB_, RB_ + 1, RB_ + 2))
e("v_cmp_eq_u32 %s, s%d, v%d" % (sr(sVA), sT, RA + 3))
e("v_cmp_eq_u32 %s, s%d, v%d" % (sr(sVB), sT, RB_ + 3))
e("v_cmp_gt_u32 %s, 2.0, v%d" % (sr(sPA), T))
e("v_cmp_gt_u32 %s, 2.0, v%d" % (sr(sPB), T + 1))
e("v_cmp_ne_u32 vcc, 0x%x, v%d" % (SENT, RA + 2))
e("s_and_b64 %s, %s, %s" % (sr(sVA), sr(sVA), sr(sPA)))
e("s_and_b64 %s, %s, %s" % (sr(sVB), sr(sVB), sr(sPB)))
e("s_and_b64 %s, vcc, %s" % (sr(sNB), sr(sVA)))
e("s_and_b64 %s, %s, %s" % (sr(sNB), sr(sNB), sr(sODD)))
e("s_lshr_b64 %s, %s, 1" % (sr(sQ), sr(sNB)))
e("s_or_b64 %s, %s, %s" % (sr(sNB), sr(sNB), sr(sQ)))
e("s_andn2_b64 %s, %s, %s" % (sr(sPA), sr(sNA), sr(sVA)))
e("s_and_b64 %s, %s, %s" % (sr(sQ), sr(sPA), sr(sODD)))
e("s_or_b64 %s, %s, %s" % (sr(sPB), sr(sNB), sr(sQ)))
e("s_lshr_b64 %s, %s, 1" % (sr(sQ), sr(sQ)))
e("s_or_b64 %s, %s, %s" % (sr(sPB), sr(sPB), sr(sQ)))
e("s_andn2_b64 %s, %s, %s" % (sr(sPB), sr(sPB), sr(sVB)))
e("s_or_b64 %s, %s, %s" % (sr(sQ), sr(sPA), sr(sPB)))
e("s_cbranch_scc0 L_got")
e("s_cmp_lt_u32 s%d, %d" % (sSPIN, OPT["spin"]))
e("s_cbranch_scc1 L_poll")
e("s_branch L_timeout")
lab("L_got")
e("s_mov_b64 exec, -1")
stamp("got", (1,4,5))
recs = [RA, RA + 1, RA + 2, RB_, RB_ + 1, RB_ + 2]
ACC, SC, SH = T + 8, T + 9, T + 2
for k, x in enumerate(recs):
    e("v_cmp_ne_u32 vcc, 0x%x, v%d" % (SENT, x))
    e("s_and_b64 %s, vcc, %s" % (sr(sM + 2 * k), sr(sNA if k < 3 else sNB)))
e("v_mov_b32 v%d, 0" % ACC)
for k, x in enumerate(recs):
    e("s_mov_b64 exec, %s" % sr(sM + 2 * k))
    e("s_cbranch_execz L_ra%d" % (2 if k < 3 else 5))
    e("v_lshrrev_b32 v%d, 20, v%d" % (RE + k, x))
    e("v_add_lshl_u32 v%d, v%d, v%d, 3" % (RE + k, RE + k, vCHB))
    if k < OPT["ke"]: e("buffer_load_dwordx2 %s, v%d, %s, 0 offen" % (vr(EV + 2 * k, 2), RE + k, sr(sED, 4)))
    e("v_bfe_u32 v%d, v%d, 19, 1" % (SH + k, x))
    e("v_mov_b32 v%d, v%d" % (RN + k, ACC))
    e("v_lshlrev_b32 v%d, 4, v%d" % (SH + k, SH + k))
    e("v_lshl_add_u32 v%d, v%d, v%d, v%d" % (ACC, vONE, SH + k, ACC))
    if k in (2, 5): lab("L_ra%d" % k)
e("s_mov_b64 exec, -1")
e("v_mov_b32 v%d, %d" % (T, L_CNT2))
nop(1)
e("v_add_u32_dpp v%d, v%d, v%d row_shr:1 row_mask:0xf bank_mask:0xf bound_ctrl:0" % (SC, ACC, ACC))
for d in ("row_shr:2 row_mask:0xf bank_mask:0xf bound_ctrl:0", "row_shr:4 row_mask:0xf bank_mask:0xf bound_ctrl:0",
          "row_shr:8 row_mask:0xf bank_mask:0xf bound_ctrl:0", "row_bcast:15 row_mask:0xa bank_mask:0xf",
          "row_bcast:31 row_mask:0xc bank_mask:0xf"):
    nop(2)
    e("v_add_u32_dpp v%d, v%d, v%d %s" % (SC, SC, SC, d))
e("s_mov_b32 exec_lo, 0"); e("s_mov_b32 exec_hi, 0x80000000")
e("v_and_b32 v%d, 0xffff, v%d" % (T + 10, SC))
e("v_lshrrev_b32 v%d, 16, v%d" % (T + 11, SC))
e("ds_add_rtn_u64 %s, v%d, %s" % (vr(T + 10, 2), T, vr(T + 10, 2)))
for k in range(OPT["ke"], 6):
    e("s_mov_b64 exec, %s" % sr(sM + 2 * k))
    e("s_cbranch_execz L_re%d" % (2 if k < 3 else 5))
    e("buffer_load_dwordx2 %s, v%d, %s, 0 offen" % (vr(EV + 2 * k, 2), RE + k, sr(sED, 4)))
    if k in (2, 5): lab("L_re%d" % k)
e("s_mov_b64 exec, -1")
e("v_sub_u32 v%d, v%d, v%d" % (SC, SC, ACC))
e("global_load_dwordx2 %s, v%d, %s sc1" % (vr(T + 22, 2), vFLG, sr(sWS)))
e("s_and_b64 %s, %s, %s" % (sr(sNA), sr(sM + 10), sr(sODD)))
e("s_waitcnt lgkmcnt(0)")
e("v_lshl_or_b32 v%d, v%d, 16, v%d" % (T + 10, T + 11, T + 10))
nop(1)
e("v_readlane_b32 s%d, v%d, 63" % (sTMP, T + 10))
stamp("ranks", (5,))
nop(2)
e("v_add_u32 v%d, s%d, v%d" % (SC, sTMP, SC))
for k, x in enumerate(recs):
    e("s_mov_b64 exec, %s" % sr(sM + 2 * k))
    e("s_cbranch_execz L_rb%d" % (2 if k < 3 else 5))
    e("v_add_u32 v%d, v%d, v%d" % (RN + k, RN + k, SC))
    e("v_bfe_u32 v%d, v%d, v%d, 16" % (RN + k, RN + k, SH + k))
    e("v_cmp_gt_u32 vcc, %d, v%d" % (CAP, RN + k))
    e("s_and_b64 exec, exec, vcc")
    e("s_mov_b64 %s, exec" % sr(sM + 2 * k))
    rec_b(x, RN + k, SH + k, T + 1)
    if k in (2, 5): lab("L_rb%d" % k)
e("s_mov_b64 exec, -1")
e("s_cmp_lg_u64 %s, 0" % sr(sNA))
e("s_cbranch_scc1 L_nextlevel")
def e_write(tag):
    for k in range(6):
        e("s_mov_b64 exec, %s" % sr(sM + 2 * k))
        e("ds_write_b64 v%d, %s offset:%d" % (RN + k, vr(EV + 2 * k, 2), 3 * CS))
    e("s_mov_b64 exec, -1")
def flag_check(tag):
    e("s_mov_b64 exec, %s" % sr(sPEND))
    e("v_not_b32 v%d, v%d" % (T + 23, T + 23))
    e("v_cmp_ne_u32 vcc, s%d, v%d" % (sT, T + 22))
    e("v_cmp_ne_u32 %s, s%d, v%d" % (sr(sQ), sT, T + 23))
    e("s_or_b64 %s, vcc, %s" % (sr(sPEND), sr(sQ)))
    e("s_mov_b64 exec, -1")
    if OPT["ppf"]:
        e("s_andn2_b64 %s, %s, %s" % (sr(sQ), sr(sNV), sr(sPEND)))
        e("s_cbranch_scc0 L_nopp%s" % tag)
        e("buffer_load_dword v%d, v%d, %s, 0 idxen" % (T + 12, vPF, sr(sPD, 4)))
        e("buffer_load_dword v%d, v%d, %s, 0 idxen offset:128" % (T + 13, vPF, sr(sPD, 4)))
        e("s_mov_b64 %s, 0" % sr(sNV))
        lab("L_nopp%s" % tag)
    e("s_mov_b64 exec, %s" % sr(sPEND))
stamp("lists", (1,5))
e("s_mov_b64 %s, -1" % sr(sPEND))
e("s_waitcnt vmcnt(1)")
stamp("eland", (5,))
e_write("a")
lab("L_flags")
e("s_waitcnt vmcnt(0)")
flag_check("b")
e("s_cbranch_execz L_flagsok")
e("global_load_dwordx2 %s, v%d, %s sc1" % (vr(T + 22, 2), vFLG, sr(sWS)))
e("s_add_u32 s%d, s%d, 1" % (sSPIN, sSPIN))
e("s_cmp_lt_u32 s%d, %d" % (sSPIN, OPT["spin"]))
e("s_cbranch_scc1 L_flags")
lab("L_timeout")
e("s_mov_b32 s%d, 2" % sMODE)
lab("L_setmode")
e("s_mov_b64 exec, -1")
e("s_waitcnt vmcnt(0)")
e("v_mov_b32 v%d, %d" % (T, L_MODE))
e("v_mov_b32 v%d, s%d" % (T + 1, sMODE))
e("ds_max_u32 v%d, v%d" % (T, T + 1))
e("s_branch L_barE")
lab("L_flagsok")
e("s_mov_b64 exec, -1")
e("s_cmp_lg_u32 s%d, 0" % sMODE)
e("s_cbranch_scc1 L_setmode")
lab("L_barE")
e("s_waitcnt lgkmcnt(0)")
e("s_barrier")
stamp("barE", (1,4,5))
e("v_mov_b32 v%d, %d" % (T, L_CNT2))
e("ds_read_b96 %s, v%d" % (vr(T + 4, 3), T))
e("s_waitcnt lgkmcnt(0)")
e("v_max_u32 v%d, v%d, v%d" % (T + 7, T + 4, T + 5))
e("v_readfirstlane_b32 s%d, v%d" % (sMODE, T + 6))
e("v_readfirstlane_b32 s%d, v%d" % (sTMP, T + 7))
if OPT["force_mode"] == 1:
    e("s_mov_b32 s%d, 1" % sMODE)
e("s_cmp_gt_u32 s%d, %d" % (sTMP, CAP))
e("s_cselect_b32 s%d, 1, 0" % sTMP)
e("s_max_u32 s%d, s%d, s%d" % (sMODE, sMODE, sTMP))
e("s_cmp_lg_u32 s%d, 0" % sMODE)
e("s_cbranch_scc1 L_slow")
lab("L_flush")
e("v_readfirstlane_b32 s%d, v%d" % (sNT, T + 4))
e("v_readfirstlane_b32 s%d, v%d" % (sTMP, T + 5))
e("s_cmp_lg_u32 s%d, 0" % sSB)
e("s_cselect_b32 s%d, s%d, s%d" % (sNT, sTMP, sNT))
e("s_min_u32 s%d, s%d, %d" % (sNT, sNT, CAP))
e("s_add_u32 s%d, s%d, 31" % (sNT, sNT))
e("s_lshr_b32 s%d, s%d, 5" % (sNT, sNT))
e("s_mul_i32 s%d, s%d, %d" % (sTMP, sSB, LSTR))
e("s_add_u32 s%d, s%d, %d" % (sTMP, sTMP, L_LIST))
e("v_and_b32 v%d, 60, v%d" % (vLI, vL))
e("v_add_u32 v%d, s%d, v%d" % (vLI, sTMP, vLI))
for t in range(R):
    e("ds_read2_b32 %s, v%d offset0:%d offset1:%d" % (vr(T + 2 * t, 2), vLI, 32 * t, 32 * t + 16))
e("v_mov_b32 v%d, v%d" % (vOH, vEB))
e("v_mov_b32 v%d, v%d" % (vS, vSL))
def dma(slot):
    setm0(sRB, slot * SLOT); nop(1)
    e(("buffer_load_dwordx4 %s, %s, 0 idxen offen " + ("sc1 " if OPT["gsc1"] else "") + "lds") % (vr(vI0, 2), sr(sPD, 4)))
    setm0(sRB, slot * SLOT + 1024); nop(1)
    e(("buffer_load_dwordx4 %s, %s, 0 idxen offen " + ("sc1 " if OPT["gsc1"] else "") + "lds") % (vr(vI1, 2), sr(sPD, 4)))
for t in range(R):
    e("s_waitcnt lgkmcnt(%d)" % (R - 1 - t))
    e("v_mov_b32 v%d, v%d" % (vI0, T + 2 * t)); e("v_mov_b32 v%d, v%d" % (vI1, T + 2 * t + 1))
    dma(t)
    stamp("g%d" % t, (5,))
stamp("gath", (1,))
e("s_cmp_lg_u32 s%d, 0" % sMODE)
e("s_cbranch_scc1 L_nou")
u_compute()
stamp("U", (1,5))
e("s_barrier")
lab("L_nou")
w_dma(sWU, 128, L_C)
e("s_cmp_eq_u32 s%d, 0" % sNT)
e("s_cbranch_scc1 L_flush_done")
def rd_idx(t):
    e("ds_read_b32 v%d, v%d offset:%d" % (vI0, vLI, 128 * t))
    e("ds_read_b32 v%d, v%d offset:%d" % (vI1, vLI, 128 * t + 64))
def rd_oh(t):
    e("ds_read_b128 %s, v%d offset:%d" % (vr(OA, 4), vOH, 512 * t))
    e("ds_read_b128 %s, v%d offset:%d" % (vr(OA + 4, 4), vOH, 512 * t + 2 * CS))
def rd_p(slot):
    e("ds_read_b128 %s, v%d offset:%d" % (vr(PA, 4), vP0, SLOT * slot))
    e("ds_read_b128 %s, v%d offset:%d" % (vr(PA + 4, 4), vP1, SLOT * slot))
def rd_s(t):
    for q in range(4): e("ds_read_b64_tr_b16 %s, v%d offset:%d" % (vr(SA + 2 * q, 2), vS, 512 * t + 128 * q))
rd_oh(0); rd_idx(R)
for j in range(8): e("v_mov_b32 v%d, 0" % (MSG + j)); e("v_mov_b32 v%d, 0" % (SA + j))
e("s_waitcnt lgkmcnt(2)")
mfma(Y0, OA, QW, "0"); mfma(Y0, OA + 4, QW + 4, Y0)
rd_oh(1)
e("s_waitcnt vmcnt(%d)" % (2 * (R - 1) + 4))
rd_p(0)
e("s_waitcnt lgkmcnt(0)")
mfma(Y0, PA, ID, Y0); mfma(Y0, PA + 4, ID + 4, Y0)
dma(0)
rd_idx(R + 1)
e("s_waitcnt vmcnt(%d)" % (2 * (R - 1) + 4))
rd_p(1)
e("s_mov_b32 s%d, 0" % sIT)
stamp("loop", (1,))
nop(4)
lab("L_loop")
for u in range(R):
    Yc, Yn = (Y0, Y1) if u % 2 == 0 else (Y1, Y0)
    ex = lambda a, b: [e("v_exp_f32 v%d, v%d" % (EE + j, Yc + j)) for j in range(a, b)]
    rc = lambda a, b: [e("v_rcp_f32 v%d, v%d" % (EE + j, EE + j)) for j in range(a, b)]
    e("s_waitcnt lgkmcnt(0)")
    mfma(Yn, PA, ID, "0")
    setm0(sRB, ((u + 1) % R) * SLOT)
    ex(0, 2)
    e(("buffer_load_dwordx4 %s, %s, 0 idxen offen " + ("sc1 " if OPT["gsc1"] else "") + "lds") % (vr(vI0, 2), sr(sPD, 4)))
    setm0(sRB, ((u + 1) % R) * SLOT + 1024)
    ex(2, 4)
    mfma(Yn, PA + 4, ID + 4, Yn)
    e(("buffer_load_dwordx4 %s, %s, 0 idxen offen " + ("sc1 " if OPT["gsc1"] else "") + "lds") % (vr(vI1, 2), sr(sPD, 4)))
    ex(4, 8)
    mfma(Yn, OA, QW, Yn)
    ex(8, 16)
    for j in range(8): e("v_pk_add_f32 %s, %s, 1.0 op_sel_hi:[1,0]" % (vr(EE + 2 * j, 2), vr(EE + 2 * j, 2)))
    mfma(Yn, OA + 4, QW + 4, Yn)
    rc(0, 4)
    mfma(AGG, MSG, SA, AGG)
    rc(4, 8)
    mfma(AGG, MSG + 4, SA + 4, AGG)
    rd_idx(u + 2 + R)
    rc(8, 10)
    rd_oh(u + 2)
    rc(10, 12)
    rd_s(u)
    rc(12, 14)
    e("s_waitcnt vmcnt(%d)" % (2 * (R - 1)))
    rd_p((u + 2) % R)
    rc(14, 16)
    e("s_add_u32 s%d, s%d, 1" % (sIT, sIT))
    for j in range(8): e("v_pk_mul_f32 %s, %s, %s" % (vr(EE + 2 * j, 2), vr(EE + 2 * j, 2), vr(Yc + 2 * j, 2)))
    e("s_cmp_ge_u32 s%d, s%d" % (sIT, sNT))
    for j in range(8): e("v_cvt_pk_bf16_f32 v%d, v%d, v%d" % (MSG + j, EE + 2 * j, EE + 2 * j + 1))
    if u < R - 1:
        e("s_cbranch_scc1 L_loop_end")
    else:
        e("v_add_u32 v%d, %d, v%d" % (vOH, 512 * R, vOH))
        e("v_add_u32 v%d, %d, v%d" % (vS, 512 * R, vS))
        e("v_add_u32 v%d, %d, v%d" % (vLI, 128 * R, vLI))
        e("s_cbranch_scc0 L_loop")
lab("L_loop_end")
e("s_waitcnt lgkmcnt(0)")
nop(1)
mfma(AGG, MSG, SA, AGG)
mfma(AGG, MSG + 4, SA + 4, AGG)
lab("L_flush_done")
e("s_cmp_lg_u32 s%d, 0" % sMODE)
e("s_cbranch_scc1 L_slow_ret")
lab("L_epi")
stamp("epi", (1,))
e("v_and_b32 v%d, 0x13, v%d" % (T, vL))
e("v_bfe_u32 v%d, v%d, 2, 1" % (T + 1, vL))
e("v_lshl_or_b32 v%d, v%d, 3, v%d" % (T, T + 1, T))
e("v_bfe_u32 v%d, v%d, 3, 1" % (T + 1, vL))
e("v_lshl_or_b32 v%d, v%d, 2, v%d" % (T, T + 1, T))
e("v_bfe_u32 v%d, v%d, 2, 2" % (T + 1, T))
e("v_lshlrev_b32 v%d, 4, v%d" % (T + 1, T + 1))
e("v_lshl_add_u32 v%d, v%d, 6, v%d" % (T, T, T + 1))
e("v_lshrrev_b32 v%d, 5, v%d" % (T + 1, vL))
e("v_lshl_add_u32 v%d, v%d, 3, v%d" % (T, T + 1, T))
e("v_add_u32 v%d, s%d, v%d" % (T, sRB, T))
for i in range(1, 4): e("v_xor_b32 v%d, %d, v%d" % (T + i, 16 * i, T))
for j in range(8): e("v_pk_mul_f32 %s, %s, %s" % (vr(AGG + 2 * j, 2), vr(AGG + 2 * j, 2), sr(sC2)))
for j in range(8): e("v_cvt_pk_bf16_f32 v%d, v%d, v%d" % (MSG + j, AGG + 2 * j, AGG + 2 * j + 1))
e("s_waitcnt vmcnt(0)")
for i in range(4): e("ds_write_b64 v%d, %s" % (T + i, vr(MSG + 2 * i, 2)))
e("s_lshl_b32 s%d, s%d, 13" % (sTMP, sSB))
e("s_add_u32 s%d, s%d, 0x%x" % (sTMP, sTMP, L_RING))
e("v_add_u32 v%d, s%d, v%d" % (T + 21, sTMP, vAS0))
e("v_add_u32 v%d, s%d, v%d" % (T + 22, sTMP, vAS1))
e("v_add_u32 v%d, 0x%x, v%d" % (T + 20, L_C, vWP))
e("s_waitcnt lgkmcnt(0)")
e("s_barrier")
def rdf(j):
    e("ds_read_b128 %s, v%d offset:%d" % (vr(XF + 4 * j, 4), T + 21 + (j & 1), (j >> 1) * 2048))
    for u in range(2):
        e("ds_read_b64_tr_b16 %s, v%d offset:%d" % (vr(W1F + 4 * j + 2 * u, 2), T + 20, j * 1024 + u * 256))
for j in range(5): rdf(j)
for j in range(8):
    e("s_waitcnt lgkmcnt(%d)" % (3 * min(4, 7 - j)))
    mfma(U, W1F + 4 * j, XF + 4 * j, U)
    if j + 5 < 8: rdf(j + 5)
node_idx(2)
tr_addr(sRB, SLOT)
srd(sXD, sOUT, 256, N)
for j in range(8): e("v_pk_mul_f32 %s, %s, %s" % (vr(EE + 2 * j, 2), vr(U + 2 * j, 2), sr(sC1)))
for j in range(16): e("v_exp_f32 v%d, v%d" % (EE + j, EE + j))
for j in range(8): e("v_pk_add_f32 %s, %s, 1.0 op_sel_hi:[1,0]" % (vr(EE + 2 * j, 2), vr(EE + 2 * j, 2)))
for j in range(16): e("v_rcp_f32 v%d, v%d" % (EE + j, EE + j))
for j in range(8): e("v_pk_mul_f32 %s, %s, %s" % (vr(EE + 2 * j, 2), vr(EE + 2 * j, 2), vr(U + 2 * j, 2)))
for j in range(8): e("v_cvt_pk_bf16_f32 v%d, v%d, v%d" % (MSG + j, EE + 2 * j, EE + 2 * j + 1))
tr_store(MSG, sXD, ["", " sc1", " nt", " sc0 sc1", " sc1 nt"][OPT["of"]])
e("s_or_b32 s%d, s2, s%d" % (sTMP, sW))
e("s_cbranch_scc1 L_noep")
e("v_mov_b32 v%d, 0" % (T + 1))
e("v_mov_b32 v%d, s%d" % (T + 2, sE1))
e("s_mov_b64 exec, 1")
e("global_store_dword v%d, v%d, %s sc1" % (T + 1, T + 2, sr(sWS)))
e("s_mov_b64 exec, -1")
lab("L_noep")
if OPT["stamps"]:
    e("s_mov_b64 exec, -1")
    e("s_waitcnt vmcnt(0)")
    stamp("end", (1,2,3,4,5))
    e("v_mov_b32 v%d, s%d" % (vST + 14, sSPIN)); e("v_mov_b32 v%d, s%d" % (vST + 15, sNT))
    e("s_lshl_b32 s%d, s2, 3" % sTMP); e("s_add_u32 s%d, s%d, s%d" % (sTMP, sTMP, sW))
    e("s_lshl_b32 s%d, s%d, 6" % (sTMP, sTMP)); e("s_add_u32 s%d, s%d, 0x%x" % (sTMP, sTMP, W_STAMP))
    e("v_mov_b32 v%d, s%d" % (T, sTMP))
    e("s_mov_b64 exec, 1")
    if OPT["enc"] >= 0:
        e("v_not_b32 v%d, v%d" % (vST + 15, vST))
        e("v_mov_b32 v%d, 0" % T)
        e("s_cmp_lg_u32 s%d, 0" % sW)
        e("s_cbranch_scc1 L_enc0")
        e("global_atomic_umax v%d, v%d, %s sc1" % (T, vST + 15, sr(sDBG)))
        lab("L_enc0")
        e("v_readfirstlane_b32 s%d, v%d" % (sQ, vST))
        e("s_add_u32 s%d, s%d, 5000" % (sQ, sQ))
        lab("L_enc1")
        e("s_sleep 8")
        e("s_memrealtime %s" % sr(sST)); e("s_waitcnt lgkmcnt(0)")
        e("s_sub_u32 s%d, s%d, s%d" % (sTMP, sST, sQ))
        e("s_cmp_lt_i32 s%d, 0" % sTMP)
        e("s_cbranch_scc1 L_enc1")
        e("global_load_dword v%d, v%d, %s sc1" % (T + 1, T, sr(sDBG)))
        e("s_waitcnt vmcnt(0)")
        e("v_readfirstlane_b32 s%d, v%d" % (sQ, T + 1))
        e("s_not_b32 s%d, s%d" % (sQ, sQ))
        if OPT["enc"] < 16:
            e("v_readfirstlane_b32 s%d, v%d" % (sQ + 1, vST + OPT["enc"]))
            e("s_sub_u32 s%d, s%d, s%d" % (sQ + 1, sQ + 1, sQ))
            e("s_min_u32 s%d, s%d, 10000" % (sQ + 1, sQ + 1))
            e("s_mul_i32 s%d, s%d, 10" % (sQ + 1, sQ + 1))
            e("s_add_u32 s%d, s%d, s%d" % (sQ, sQ, sQ + 1))
        e("s_add_u32 s%d, s%d, 10000" % (sQ, sQ))
        lab("L_enc2")
        e("s_memrealtime %s" % sr(sST)); e("s_waitcnt lgkmcnt(0)")
        e("s_sub_u32 s%d, s%d, s%d" % (sTMP, sST, sQ))
        e("s_cmp_lt_i32 s%d, 0" % sTMP)
        e("s_cbranch_scc1 L_enc2")
    elif OPT["dbg"]:
        e("v_not_b32 v%d, v%d" % (vST + 15, vST))
        e("v_mov_b32 v%d, 0" % T)
        for j in range(16): e("global_atomic_umax v%d, v%d, %s offset:%d sc1" % (T, vST + j, sr(sDBG), 4 * j))
    else:
        for j in range(4): e("global_store_dwordx4 v%d, %s, %s offset:%d" % (T, vr(vST + 4 * j, 4), sr(sWS), 16 * j))
lab("L_end")
e("s_endpgm")

for b, r, rec in cold:
    lab("L_putx%d" % b)
    e("s_and_b64 %s, exec, vcc" % sr(sPA))
    e("s_mov_b64 exec, %s" % sr(sQ))
    e("v_cmp_gt_u32 vcc, 24, v%d" % r)
    e("v_subrev_u32 v%d, 0x%x, v%d" % (T, L_IMG + 64, T))
    e("v_or_b32 v%d, 0x80000000, v%d" % (rec, rec))
    e("s_or_b64 exec, vcc, %s" % sr(sPA))
    e("s_branch L_putr%d" % b)
lab("L_pub_more")
e("v_subrev_u32 v%d, 0x%x, v%d" % (T + 12, L_IMG, T + 19))
e("ds_read_b128 %s, v%d" % (vr(MSG, 4), T + 12))
e("ds_read_b128 %s, v%d offset:32" % (vr(MSG + 4, 4), T + 12))
e("ds_write_b128 v%d, %s" % (T + 12, vr(ZR, 4)))
e("ds_write_b128 v%d, %s offset:32" % (T + 12, vr(ZR, 4)))
e("v_add_u32 v%d, 0x400000, v%d" % (T + 10, T + 23))
e("v_add_u32 v%d, 0x600000, v%d" % (T + 11, T + 23))
e("v_mov_b32 v%d, 0x%x" % (T + 12, SENT))
e("s_waitcnt lgkmcnt(0)")
for j in (0, 1, 2, 4, 5, 6):
    e("v_cmp_gt_i32 vcc, 0, v%d" % (MSG + j))
    e("v_and_b32 v%d, 0x7fffffff, v%d" % (MSG + j, MSG + j))
    nop(1)
    e("v_cndmask_b32 v%d, v%d, v%d, vcc" % (MSG + j, T + 12, MSG + j))
e("v_mov_b32 v%d, s%d" % (MSG + 3, sT))
e("v_mov_b32 v%d, s%d" % (MSG + 7, sT))
e("global_store_dwordx4 v%d, %s, %s sc1" % (T + 10, vr(MSG, 4), sr(sWS)))
e("global_store_dwordx4 v%d, %s, %s sc1" % (T + 11, vr(MSG + 4, 4), sr(sWS)))
e("s_waitcnt vmcnt(2)")
e("s_branch L_pub1")

lab("L_nextlevel")
e("s_cmp_lg_u32 s%d, 0" % sLVL)
e("s_cbranch_scc0 L_nl1")
e("s_mov_b32 s%d, 1" % sMODE)
e("s_mov_b64 %s, -1" % sr(sPEND))
e("s_branch L_flags")
lab("L_nl1")
e("s_waitcnt vmcnt(0)")
e_write("b")
e("s_lshr_b64 %s, %s, 1" % (sr(sQ), sr(sNA)))
e("s_or_b64 %s, %s, %s" % (sr(sNA), sr(sNA), sr(sQ)))
e("s_mov_b32 s%d, 1" % sLVL)
e("v_add_u32 v%d, 0x400000, v%d" % (vSWP, vSWP))
e("s_waitcnt lgkmcnt(0)")
e("s_branch L_level")

lab("L_slow")
e("s_waitcnt vmcnt(0)")
u_compute()
nop(8)
e("s_barrier")
srd(sDD, sDST, 0, E * 4)
srd(sSD, sSRC, 0, E * 4)
e("s_cmp_lg_u32 s%d, 2" % sMODE)
e("s_cbranch_scc1 L_scan")
for j in range(4): e("v_mov_b32 v%d, -1" % (T + j))
e("v_lshrrev_b32 v%d, 1, v0" % (T + 10))
e("v_and_b32 v%d, 1, v0" % (T + 11))
e("v_lshlrev_b32 v%d, 4, v%d" % (T + 11, T + 11))
e("s_lshl_b32 s%d, s2, 5" % sTMP)
e("s_add_u32 s%d, s%d, 0x%x" % (sTMP, sTMP, W_SLOT))
e("v_lshl_add_u32 v%d, v%d, 13, v%d" % (T + 14, T + 10, T + 11))
e("v_add_u32 v%d, s%d, v%d" % (T + 14, sTMP, T + 14))
for p in range(4):
    e("global_store_dwordx4 v%d, %s, %s sc1" % (T + 14, vr(T, 4), sr(sWS)))
    e("v_add_u32 v%d, 0x200000, v%d" % (T + 14, T + 14))
flag_slot()
e("v_and_b32 v%d, 7, v0" % (T + 10))
e("v_lshl_add_u32 v%d, v%d, 13, s%d" % (T + 10, T + 10, sTMP))
e("global_store_dwordx2 v%d, %s, %s sc1" % (T + 10, vr(T, 2), sr(sWS)))
w_dma(sWM, 0, L_C)
e("s_waitcnt vmcnt(0)")
e("s_barrier")
w_frag(WT, vWP, L_C)
e("s_mov_b32 s%d, 0" % sCP)
lab("L_pall")
e("s_barrier")
node_idx(sCP)
x_dma()
e("s_waitcnt vmcnt(0)")
e("s_barrier")
tile_frag(XF, L_X, 2048)
e("s_waitcnt lgkmcnt(0)")
p_compute(WT)
e("s_add_u32 s%d, s%d, 1" % (sCP, sCP))
e("s_cmp_lt_u32 s%d, 256" % sCP)
e("s_cbranch_scc1 L_pall")
e("s_waitcnt vmcnt(0)")
lab("L_scan")
e("s_mov_b32 s%d, 0" % sSTEP)
e("s_mov_b64 %s, 0" % sr(sPEND))
vR, vE = XF, XF + 1
lab("L_scan_reset")
e("s_barrier")
reset_lists("b")
e("s_waitcnt lgkmcnt(0)")
e("s_barrier")
e("s_cmp_lg_u32 s%d, 3" % sMODE)
e("s_cbranch_scc0 L_scan_retry")
lab("L_scan_step")
e("v_add_u32 v%d, s%d, v0" % (vE, sSTEP))
e("v_lshlrev_b32 v%d, 2, v%d" % (T + 2, vE))
e("buffer_load_dword v%d, v%d, %s, 0 offen" % (T + 10, T + 2, sr(sDD, 4)))
e("buffer_load_dword v%d, v%d, %s, 0 offen" % (T + 11, T + 2, sr(sSD, 4)))
e("s_add_u32 s%d, s%d, 512" % (sSTEP, sSTEP))
e("v_cmp_gt_u32 %s, %d, v%d" % ("vcc", E, vE))
e("s_mov_b64 %s, vcc" % sr(sPEND))
e("s_waitcnt vmcnt(0)")
make_rec(T + 10, T + 11, vR, T, T + 1)
e("v_and_b32 v%d, 255, v%d" % (T + 10, T + 10))
e("v_cmp_eq_u32 vcc, s2, v%d" % (T + 10))
e("s_and_b64 %s, %s, vcc" % (sr(sPEND), sr(sPEND)))
lab("L_scan_retry")
e("s_mov_b64 exec, %s" % sr(sPEND))
e("s_cbranch_execz L_scan_b")
e("v_mov_b32 v%d, v%d" % (RE, vE))
rec_a(vR, RN, RE, EV)
e("s_waitcnt lgkmcnt(0)")
e("v_cmp_gt_u32 vcc, %d, v%d" % (CAP, RN))
e("s_andn2_b64 %s, %s, vcc" % (sr(sPEND), sr(sPEND)))
e("s_and_b64 exec, exec, vcc")
e("v_bfe_u32 v%d, v%d, 19, 1" % (T, vR))
e("v_lshlrev_b32 v%d, 4, v%d" % (T, T))
rec_b(vR, RN, T, T + 1)
e("s_waitcnt vmcnt(0)")
e("ds_write_b64 v%d, %s offset:%d" % (RN, vr(EV, 2), 3 * CS))
lab("L_scan_b")
e("s_mov_b64 exec, -1")
e("s_waitcnt lgkmcnt(0)")
e("s_barrier")
e("v_mov_b32 v%d, %d" % (T, L_CNT2))
e("ds_read_b64 %s, v%d" % (vr(T + 4, 2), T))
e("s_waitcnt lgkmcnt(0)")
e("v_max_u32 v%d, v%d, v%d" % (T + 7, T + 4, T + 5))
nop(1)
e("v_readfirstlane_b32 s%d, v%d" % (sTMP, T + 7))
e("s_mov_b32 s%d, 3" % sMODE)
e("s_cmp_gt_u32 s%d, %d" % (sTMP, CAP))
e("s_cbranch_scc1 L_flush")
e("s_mov_b32 s%d, 4" % sMODE)
e("s_cmp_ge_u32 s%d, %d" % (sSTEP, E))
e("s_cbranch_scc1 L_flush")
e("s_barrier")
e("s_branch L_scan_step")
lab("L_slow_ret")
e("s_waitcnt vmcnt(0)")
e("s_cmp_eq_u32 s%d, 4" % sMODE)
e("s_cbranch_scc1 L_epi")
e("s_branch L_scan_reset")
lab("L_codeend")

out.append('.section .rodata,"a"'); out.append(".p2align 6")
out.append(".amdhsa_kernel " + KN)
for l in ["next_free_vgpr 256", "next_free_sgpr 102", "accum_offset 256", "group_segment_fixed_size 0", "kernarg_size 72",
          "user_sgpr_count 2", "user_sgpr_kernarg_segment_ptr 1", "system_sgpr_workgroup_id_x 1"]:
    out.append("  .amdhsa_" + l)
out.append(".end_amdhsa_kernel")
if OPT["stamps"]: print(" ".join("t%d=%s" % (i, n) for i, n in enumerate(snames)))
open(sys.argv[1], "w").write("\n".join(out) + "\n")
```
